```python
import torch

def _softmax(x, axis=-1):
    return torch.softmax(x, dim=axis)

def _gelu(x):
    return torch.nn.functional.gelu(x, approximate='tanh')

def _silu(x):
    return torch.nn.functional.silu(x)

def _sigmoid(x):
    return torch.sigmoid(x)

def _layernorm(x, axis=-1, eps=1e-05):
    m = x.mean(dim=axis, keepdim=True)
    v = x.var(dim=axis, keepdim=True, unbiased=False)
    return (x - m) / torch.sqrt(v + eps)

def _scatter_add(tgt, idx, src, axis=0):
    return tgt.clone().index_add_(axis, idx, src)

def _segment_sum(src, seg, n):
    out = torch.zeros((n,) + src.shape[1:], dtype=src.dtype)
    return out.index_add_(0, seg, src)

def _pad(x, pw):
    flat = tuple((v for pair in reversed(pw) for v in pair))
    return torch.nn.functional.pad(x, flat)
kernel_name = 'gather_scatter__tensor_product_equiv_equiformer__graph'

def setup_inputs():

    _w = lambda a: (lambda t: t.to(torch.bfloat16) if t.is_floating_point() else t)(torch.as_tensor(a))
    N, deg, C, De = (10000, 64, 64, max(4, 1))
    E = N * deg
    src = (lambda lo, hi, *s: torch.randint(lo, hi, s))(0, N, E).to(torch.int64)
    dst = (lambda lo, hi, *s: torch.randint(lo, hi, s))(0, N, E).to(torch.int64)
    rvec = (lambda *s: torch.randn(*s, dtype=torch.bfloat16) * 0.05)(E, 3).to(float)
    rn = (torch.linalg.norm(rvec, dim=-1, keepdim=True) + 1e-06).to(float)
    rhat = (rvec / rn).to(float)
    eps = torch.zeros((3, 3, 3), dtype=float)
    eps[0, 1, 2] = eps[1, 2, 0] = eps[2, 0, 1] = 1.0
    eps[0, 2, 1] = eps[2, 1, 0] = eps[1, 0, 2] = -1.0
    return {'x': _w((lambda *s: torch.randn(*s, dtype=torch.bfloat16) * 0.4)(N, 4 * C).to(float)), 'rhat': _w(rhat), 'e_attr': _w((lambda *s: torch.randn(*s, dtype=torch.bfloat16) * 0.4)(E, De).to(float)), 'src': _w(src), 'dst': _w(dst), 'w_rad': _w((lambda *s: torch.randn(*s, dtype=torch.bfloat16) * 0.4)(De, 5 * C).to(float)), 'w_si0': _w((lambda *s: torch.randn(*s, dtype=torch.bfloat16) * 0.4)(2 * C, C).to(float)), 'w_si1': _w((lambda *s: torch.randn(*s, dtype=torch.bfloat16) * 0.05)(3 * C, C).to(float)), 'cg_eps': _w(eps)}

def reference(x, rhat, e_attr, src, dst, w_rad, w_si0, w_si1, cg_eps):
    N = x.shape[0]
    C = w_si0.shape[1]
    E = rhat.shape[0]
    x0 = x[:, :C].clone()
    x1 = x[:, C:].reshape(N, 3, C)
    R = (e_attr @ w_rad).reshape(E, 5, C)
    f0 = x0[src]
    f1 = x1[src]
    Y1 = rhat
    p00_0 = f0 * R[:, 0, :]
    p11_0 = torch.einsum('ejc,ej->ec', f1, Y1) * R[:, 1, :]
    p01_1 = torch.einsum('ec,ej->ejc', f0, Y1) * R[:, 2, :][:, None, :]
    p10_1 = f1 * R[:, 3, :][:, None, :]
    p11_1 = torch.einsum('ijk,ekc,ej->eic', cg_eps, f1, Y1) * R[:, 4, :][:, None, :]
    m0 = torch.concatenate([p00_0, p11_0], axis=-1) @ w_si0
    m1 = torch.einsum('ejp,pc->ejc', torch.concatenate([p01_1, p10_1, p11_1], axis=-1), w_si1)
    agg0 = _segment_sum(m0, dst, N)
    agg1 = _segment_sum(m1.reshape(E, 3 * C), dst, N).reshape(N, 3, C)
    gate = _sigmoid(agg0)
    out1 = agg1 * gate[:, None, :]
    return torch.concatenate([agg0, out1.reshape(N, 3 * C)], axis=-1)
```

```python
class Asm:
    def __init__(self):
        self.lines = []
        self._uid = 0

    def __call__(self, s=""):
        for ln in s.split("\n"):
            self.lines.append(ln)

    def label(self, name):
        self.lines.append(f"{name}:")

    def uid(self, p="L"):
        self._uid += 1
        return f"{p}_{self._uid}"

    def text(self):
        return "\n".join(self.lines) + "\n"


def vr(a, n=1):
    return f"v{a}" if n == 1 else f"v[{a}:{a+n-1}]"


def sr(a, n=1):
    return f"s{a}" if n == 1 else f"s[{a}:{a+n-1}]"


def kernel_header(a, name):
    a(".text")
    a(f".globl {name}")
    a(".p2align 8")
    a(f".type {name},@function")
    a.label(name)


def kernel_desc(a, name, vgpr, sgpr=102, kernarg=96, accum=None):
    if accum is None:
        accum = (vgpr + 3) // 4 * 4
    a('.section .rodata,"a"')
    a(".p2align 6")
    a(f".amdhsa_kernel {name}")
    a(f"  .amdhsa_next_free_vgpr {vgpr}")
    a(f"  .amdhsa_next_free_sgpr {sgpr}")
    a(f"  .amdhsa_accum_offset {accum}")
    a("  .amdhsa_group_segment_fixed_size 0")
    a(f"  .amdhsa_kernarg_size {kernarg}")
    a("  .amdhsa_user_sgpr_count 2")
    a("  .amdhsa_user_sgpr_kernarg_segment_ptr 1")
    a("  .amdhsa_system_sgpr_workgroup_id_x 1")
    a(".end_amdhsa_kernel")
    a(".text")


def metadata(a, kernels, kernarg):
    a(".amdgpu_metadata")
    a("---")
    a("amdhsa.version: [1, 2]")
    a("amdhsa.kernels:")
    for name, vgpr, sgpr, wg in kernels:
        a(f"  - .name: {name}")
        a(f"    .symbol: {name}.kd")
        a(f"    .kernarg_segment_size: {kernarg}")
        a("    .kernarg_segment_align: 8")
        a("    .group_segment_fixed_size: 0")
        a("    .private_segment_fixed_size: 0")
        a("    .wavefront_size: 64")
        a(f"    .sgpr_count: {sgpr}")
        a(f"    .vgpr_count: {vgpr}")
        a(f"    .max_flat_workgroup_size: {wg}")
        a("    .args:")
        a(f"      - {{.name: kernargs, .size: {kernarg}, .offset: 0, .value_kind: by_value}}")
    a("...")
    a(".end_amdgpu_metadata")
```

```python
from asmlib import *

E = 640000
N = 10000
G1 = 256
CH = 2500
NBK = 256
WS_REC = 0
WS_LOC = E * 16
WS_TAB = WS_LOC + E
WS_END = WS_TAB + NBK * G1 * 4
WS_STAMP = 12 * 1024 * 1024
K1_THREADS = 640
K1_LDS = 6144
L_HIST, L_BASE, L_LOC, L_REC = 0, 2560, 3584, 6144
K1_LDS_ST = L_REC + 4 * K1_THREADS * 16


def srd(a, base, ptr, size, stride=0):
    a(f"s_mov_b32 s{base}, s{ptr}")
    a(f"s_and_b32 s{base+1}, s{ptr+1}, 0xffff")
    if stride:
        a(f"s_or_b32 s{base+1}, s{base+1}, {stride << 16}")
    a(f"s_mov_b32 s{base+2}, {size}")
    a(f"s_mov_b32 s{base+3}, 0x20000")


def wave_scan(a, v):
    for sh in (1, 2, 4, 8):
        a("s_nop 1")
        a(f"v_add_u32_dpp v{v}, v{v}, v{v} row_shr:{sh} row_mask:0xf bank_mask:0xf bound_ctrl:0")
    a("s_nop 1")
    a(f"v_add_u32_dpp v{v}, v{v}, v{v} row_bcast:15 row_mask:0xa bank_mask:0xf")
    a("s_nop 1")
    a(f"v_add_u32_dpp v{v}, v{v}, v{v} row_bcast:31 row_mask:0xc bank_mask:0xf")


def stamp(a, sreg):
    a(f"s_memrealtime s[{sreg}:{sreg+1}]")


def gen_k1(a, name, stamps=False, staged=True, stflag=''):
    kernel_header(a, name)
    done = name + "_done"
    a(f"s_cmp_ge_u32 s2, {G1}")
    a(f"s_cbranch_scc1 {done}")
    if stamps:
        stamp(a, 60)
    a("s_load_dwordx4 s[4:7], s[0:1], 8")
    a("s_load_dwordx4 s[8:11], s[0:1], 24")
    a("s_load_dwordx2 s[12:13], s[0:1], 88")
    a("v_lshlrev_b32 v1, 2, v0")
    a("v_mov_b32 v2, 0")
    a("ds_write_b32 v1, v2")
    a("v_lshlrev_b32 v3, 4, v0")
    a("v_lshlrev_b32 v4, 5, v0")
    a("v_mul_u32_u24 v5, 24, v0")
    a(f"s_mul_i32 s14, s2, {CH*4}")
    a(f"s_mul_i32 s15, s2, {CH*8}")
    a(f"s_mul_i32 s16, s2, {CH*6}")
    a(f"s_mul_i32 s17, s2, {CH}")
    a(f"s_mul_i32 s18, s2, {CH*16}")
    a(f"v_cmp_gt_u32 vcc, {CH//4}, v0")
    a("s_waitcnt lgkmcnt(0)")
    srd(a, 20, 10, E * 4)
    srd(a, 24, 8, E * 4)
    srd(a, 28, 6, E * 8)
    srd(a, 32, 4, E * 6)
    srd(a, 36, 12, WS_STAMP + 65536 if stamps else WS_END)
    a("s_and_saveexec_b64 s[40:41], vcc")
    a("buffer_load_dwordx4 v[8:11], v3, s[20:23], s14 offen")
    a("buffer_load_dwordx4 v[12:15], v3, s[24:27], s14 offen")
    a("buffer_load_dwordx4 v[16:19], v4, s[28:31], s15 offen")
    a("buffer_load_dwordx4 v[20:23], v4, s[28:31], s15 offen offset:16")
    a("buffer_load_dwordx4 v[24:27], v5, s[32:35], s16 offen")
    a("buffer_load_dwordx2 v[28:29], v5, s[32:35], s16 offen offset:16")
    a("s_mov_b32 s19, 429497")
    a("s_movk_i32 s42, 625")
    a("s_movk_i32 s43, 205")
    a("v_mov_b32 v2, 1")
    a("s_barrier")
    a("s_waitcnt vmcnt(5)")
    if stamps:
        stamp(a, 62)
    for k in range(4):
        d = 8 + k
        a(f"v_mul_u32_u24 v{30+k}, s19, v{d}")
        a(f"v_lshrrev_b32 v{30+k}, 24, v{30+k}")
    for k in range(4):
        a(f"v_mad_u32_u24 v{42+k}, v{30+k}, s42, 15")
        a(f"v_lshrrev_b32 v{42+k}, 4, v{42+k}")
        a(f"v_sub_u32 v{42+k}, v{8+k}, v{42+k}")
        a(f"v_lshlrev_b32 v{30+k}, 2, v{30+k}")
        a(f"ds_add_rtn_u32 v{38+k}, v{30+k}, v2")
    for k in range(4):
        a(f"v_mul_u32_u24 v{34+k}, s43, v{42+k}")
        a(f"v_lshrrev_b32 v{34+k}, 10, v{34+k}")
        a(f"v_mad_u32_u24 v{34+k}, v{34+k}, 3, v{42+k}")
    a("s_waitcnt lgkmcnt(0)")
    a("s_barrier")
    a("s_mov_b64 exec, -1")
    a("v_and_b32 v6, 63, v0")
    a("v_lshlrev_b32 v7, 4, v6")
    a(f"ds_read_b128 v[44:47], v7 offset:{L_HIST}")
    a("s_waitcnt lgkmcnt(0)")
    a("v_add_u32 v48, v44, v45")
    a("v_add_u32 v49, v48, v46")
    a("v_add_u32 v50, v49, v47")
    a("v_mov_b32 v51, v50")
    wave_scan(a, 51)
    a("v_sub_u32 v52, v51, v50")
    a("v_add_u32 v53, v52, v44")
    a("v_add_u32 v54, v52, v48")
    a("v_add_u32 v55, v52, v49")
    a(f"ds_write_b128 v7, v[52:55] offset:{L_BASE}")
    for k in range(4):
        a(f"v_add_u32 v{60+k}, s17, v{52+k}")
        a(f"v_lshl_or_b32 v{60+k}, v{44+k}, 20, v{60+k}")
    a("s_waitcnt lgkmcnt(0)")
    a("s_mov_b64 exec, s[40:41]")
    a("s_and_b64 exec, exec, vcc")
    for k in range(4):
        a(f"ds_read_b32 v{44+k}, v{30+k} offset:{L_BASE}")
    a("s_waitcnt lgkmcnt(0)")
    for k in range(4):
        a(f"v_add_u32 v{38+k}, v{38+k}, v{44+k}")
        a(f"ds_write_b8 v{38+k}, v{34+k} offset:{L_LOC}")
    a("s_waitcnt lgkmcnt(0)")
    a("s_barrier")
    a(f"ds_read_b32 v7, v1 offset:{L_LOC}")
    if stamps:
        stamp(a, 64)
    a("s_waitcnt vmcnt(0)")
    if stamps:
        stamp(a, 66)
    a("s_mov_b32 s44, 0x05040100")
    a("s_mov_b32 s45, 0x05040302")
    R = 24
    for k in range(4):
        r = 44 + 4 * k
        a(f"v_mov_b32 v{r}, v{16+2*k}")
        a(f"v_mov_b32 v{r+1}, v{17+2*k}")
    a(f"v_mov_b32 v46, v{R}")
    a(f"v_perm_b32 v47, v12, v{R+1}, s44")
    a(f"v_alignbit_b32 v50, v{R+2}, v{R+1}, 16")
    a(f"v_perm_b32 v51, v13, v{R+2}, s45")
    a(f"v_mov_b32 v54, v{R+3}")
    a(f"v_perm_b32 v55, v14, v{R+4}, s44")
    a(f"v_alignbit_b32 v58, v{R+5}, v{R+4}, 16")
    a(f"v_perm_b32 v59, v15, v{R+5}, s45")
    for k in range(4):
        a(f"v_lshlrev_b32 v{38+k}, 4, v{38+k}")
    if not staged:
        for k in range(4):
            r = 44 + 4 * k
            a(f"buffer_store_dwordx4 v[{r}:{r+3}], v{38+k}, s[36:39], s18 offen {stflag}")
    else:
        for k in range(4):
            r = 44 + 4 * k
            a(f"ds_write_b128 v{38+k}, v[{r}:{r+3}] offset:{L_REC}")
        a("s_waitcnt lgkmcnt(0)")
        a("s_barrier")
        a("s_mov_b64 s[50:51], exec")
        a("s_mov_b64 exec, -1")
        for k in range(4):
            a(f"ds_read_b128 v[{44+4*k}:{47+4*k}], v3 offset:{L_REC + k*K1_THREADS*16}")
        a(f"v_add_u32 v38, {3*K1_THREADS*16}, v3")
        a(f"v_cmp_gt_u32 vcc, {CH*16}, v38")
        for k in range(3):
            a(f"v_add_u32 v{39+k}, {k*K1_THREADS*16}, v3")
        for k in range(3):
            a(f"s_waitcnt lgkmcnt({3-k})")
            a(f"buffer_store_dwordx4 v[{44+4*k}:{47+4*k}], v{39+k}, s[36:39], s18 offen {stflag}")
        a("s_waitcnt lgkmcnt(0)")
        a("s_and_b64 exec, exec, vcc")
        tail = name + "_tail"
        a(f"s_cbranch_execz {tail}")
        a(f"buffer_store_dwordx4 v[56:59], v38, s[36:39], s18 offen {stflag}")
        a.label(tail)
        a("s_mov_b64 exec, s[50:51]")
    a("s_waitcnt lgkmcnt(0)")
    a(f"s_add_u32 s46, s17, {WS_LOC}")
    a("buffer_store_dword v7, v1, s[36:39], s46 offen")
    a("v_readfirstlane_b32 s47, v0")
    a("s_nop 3")
    a("s_cmp_ge_u32 s47, 64")
    skip = name + "_notab"
    a(f"s_cbranch_scc1 {skip}")
    a("s_lshl_b32 s46, s2, 2")
    a(f"s_add_u32 s46, s46, {WS_TAB}")
    a("v_lshlrev_b32 v6, 12, v6")
    for k in range(4):
        a(f"buffer_store_dword v{60+k}, v6, s[36:39], s46 offen offset:{k*1024}")
    a.label(skip)
    if stamps:
        a("s_waitcnt vmcnt(0)")
        stamp(a, 68)
        a("s_waitcnt lgkmcnt(0)")
        a("v_readfirstlane_b32 s47, v0")
        a("s_nop 3")
        a("s_cmp_lg_u32 s47, 0")
        a(f"s_cbranch_scc1 {done}")
        a("s_mov_b64 exec, 1")
        for i in range(10):
            a(f"v_mov_b32 v{8+i}, s{60+i}")
        a("v_mov_b32 v6, 0")
        a("s_lshl_b32 s46, s2, 6")
        a(f"s_add_u32 s46, s46, {WS_STAMP}")
        a("buffer_store_dwordx4 v[8:11], v6, s[36:39], s46 offen")
        a("buffer_store_dwordx4 v[12:15], v6, s[36:39], s46 offen offset:16")
        a("buffer_store_dwordx2 v[16:17], v6, s[36:39], s46 offen offset:32")
    a.label(done)
    a("s_endpgm")
    kernel_desc(a, name, 64, sgpr=80)
    return (name, 64, 80, K1_THREADS)


if __name__ == "__main__":
    a = Asm()
    a('.amdgcn_target "amdgcn-amd-amdhsa--gfx950"')
    ks = [gen_k1(a, "part_kernel"), gen_k1(a, "parts_kernel", stamps=True),
          gen_k1(a, "partd_kernel", stamps=True, staged=False),
          gen_k1(a, "partnt_kernel", stamps=True, stflag="nt"),
          gen_k1(a, "partsc_kernel", stamps=True, stflag="sc0 sc1")]
    metadata(a, ks, 96)
    open("k1.s", "w").write(a.text())
```

```python
from asmlib import *
from gen_k1 import (E, N, G1, CH, NBK, WS_REC, WS_LOC, WS_TAB, WS_END, WS_STAMP, srd, wave_scan)

K2_THREADS = 512
CAP = 3072
L_CNT = 0
L_FLAG = 256
L_MASK = 320
L_ONES = L_MASK + 33 * 64
L_RAW = 2816
L_P = L_RAW
P_PITCH = 2080
L_W = L_P + 40 * P_PITCH
L_GATE = L_W + 40960
G_PITCH = 272
K2_LDS = L_GATE + 48 * G_PITCH
assert L_ONES + 320 <= L_RAW
assert L_MASK % 16 == 0 and L_ONES % 16 == 0 and L_GATE % 16 == 0

V_TID = 0
V_AADDR, V_YADDR, V_YSTEP, V_Y0, V_SADDR, V_MBASE, V_TMP = 1, 2, 3, 4, 5, 6, 7
V_IDX = 8
V_A = 24
V_AN = 28
V_M = 32
V_RAW = 36
V_FRAG = 68
V_ACC = 100
V_W = 132
V_P = 164
V_X = 244
V_REC = 36
V_LOC = 72
V_RANK = 81
V_ENT = 92
V_SEG = 90
V_I = 91
V_WPK = 116
S_B, S_WV = 2, 3
S_X, S_WS, S_WR, S_W0, S_W1, S_OUT, S_XP = 16, 20, 24, 28, 32, 36, 40
S_SELLO, S_SELHI = 44, 45
S_VAL = 46
S_E = 64
S_ES = 70
S_NG, S_G32, S_GEND, S_LG, S_SOFF, S_PIDX, S_FRESH, S_PH, S_LEFT, S_S = 75, 76, 77, 78, 79, 80, 81, 82, 83, 84
S_T = 85
S_MODE, S_RND, S_NEWW = 92, 93, 94
S_ST = 96

PATHS = [
    {(0, 0): (0, 0), (0, 1): (3, 0), (1, 0): (2, 0), (1, 1): (1, 0), (2, 0): (2, 0), (2, 1): (4, 1), (3, 0): (2, 0), (3, 1): (4, 0)},
    {(0, 0): (3, 0), (0, 1): (3, 0), (1, 0): (4, 0), (1, 1): (4, 1), (2, 0): (1, 0), (2, 1): (4, 0), (3, 0): (4, 1), (3, 1): (1, 0)},
]
def path_const(ph):
    k = 0
    for q in range(4):
        for t in range(2):
            p, s = PATHS[ph][(q, t)]
            k |= (p | (s << 3)) << (4 * (2 * q + t))
    return k

OG_SLICES = [[0, 5, 10, 15], [1, 4, 14, 11], [2, 8, 7, 13], [3, 12, 9, 6]]
OG_WROWS = [[0, 8192, 8192, 8192], [16384, 16384 + 8192, 16384 + 16384, 16384 + 16384]]


def radial_addr(a, ph, vdst, vsgn, vt):
    a(f"v_bfe_u32 v{vt}, v{V_TID}, 3, 3")
    a(f"v_lshlrev_b32 v{vt}, 2, v{vt}")
    a(f"s_mov_b32 s{S_T}, {path_const(ph)}")
    a(f"v_lshrrev_b32 v{vt}, v{vt}, s{S_T}")
    a(f"v_bfe_u32 v{vsgn}, v{vt}, 3, 1")
    a(f"v_and_b32 v{vt}, 7, v{vt}")
    a(f"v_lshlrev_b32 v{vt}, 7, v{vt}")
    a(f"v_and_b32 v{vdst}, 7, v{V_TID}")
    a(f"v_lshl_add_u32 v{vdst}, v{vdst}, 4, v{vt}")
    a(f"s_mov_b32 s{S_T}, 0x80008000")
    a(f"v_mul_lo_u32 v{vsgn}, v{vsgn}, s{S_T}")


def radial_load(a, vaddr, vdst):
    for d in range(4):
        a(f"buffer_load_dwordx4 v[{vdst+4*d}:{vdst+4*d+3}], v{vaddr}, s[{S_WR}:{S_WR+3}], 0 offen offset:{d*640}")


def radial_unpack(a, vpk, vsgn):
    for d in range(4):
        for i in range(4):
            a(f"v_xor_b32 v{vpk+4*d+i}, v{vpk+4*d+i}, v{vsgn}")
    for f in range(8):
        for d in range(4):
            src = vpk + 4 * d + (f >> 1)
            if f & 1:
                a(f"v_and_b32 v{V_W+4*f+d}, 0xffff0000, v{src}")
            else:
                a(f"v_lshlrev_b32 v{V_W+4*f+d}, 16, v{src}")


EOFF = [j * 16 if j < 4 else 256 + (j - 4) * 16 for j in range(8)]


def read_idx(a):
    for j in range(8):
        a(f"ds_read_u16 v{V_IDX+2*j}, v{V_SADDR} offset:{EOFF[j]}")


def issue_x(a):
    for j in range(8):
        a(f"buffer_load_dwordx4 v[{V_RAW+4*j}:{V_RAW+4*j+3}], v[{V_IDX+2*j}:{V_IDX+2*j+1}], s[{S_X}:{S_X+3}], s{S_SOFF} idxen offen")


def advance_load_stream(a, name):
    lab = a.uid(name + "_nw")
    a(f"v_add_u32 v{V_SADDR}, 512, v{V_SADDR}")
    a(f"s_add_u32 s{S_LG}, s{S_LG}, 1")
    a(f"s_cmp_lt_u32 s{S_LG}, s{S_NG}")
    a(f"s_cbranch_scc1 {lab}")
    a(f"s_lshl_b32 s{S_T}, s{S_NG}, 9")
    a(f"v_subrev_u32 v{V_SADDR}, s{S_T}, v{V_SADDR}")
    a(f"s_mov_b32 s{S_LG}, 0")
    a.label(lab)


def a_build(a):
    af, yf = V_FRAG, V_FRAG + 8
    for j in range(8):
        a(f"ds_read_u16_d16_hi v{af+j}, v{V_AADDR} offset:{EOFF[j]}")
        a(f"ds_read_u16_d16_hi v{yf+j}, v{V_YADDR} offset:{EOFF[j]}")
    a(f"v_add_u32 v{V_AADDR}, 512, v{V_AADDR}")
    a(f"v_add_u32 v{V_YADDR}, v{V_YSTEP}, v{V_YADDR}")
    for i in range(4):
        a(f"s_waitcnt lgkmcnt({12-4*i})")
        a(f"v_mul_f32 v{af+2*i}, v{af+2*i}, v{yf+2*i}")
        a(f"v_mul_f32 v{af+2*i+1}, v{af+2*i+1}, v{yf+2*i+1}")
        a(f"v_cvt_pk_bf16_f32 v{V_A+i}, v{af+2*i}, v{af+2*i+1}")


def mfma_block(a, va, fresh):
    for f in range(8):
        ac = V_ACC + 4 * f
        c = "0" if fresh else f"v[{ac}:{ac+3}]"
        a(f"v_mfma_f32_16x16x32_bf16 v[{ac}:{ac+3}], v[{va}:{va+3}], v[{V_FRAG+4*f}:{V_FRAG+4*f+3}], {c}")


def gen_k2(a, name, stamps=False, dump=None):
    kernel_header(a, name)
    done = name + "_done"
    a(f"s_cmp_ge_u32 s2, {NBK}")
    a(f"s_cbranch_scc1 {done}")
    if stamps:
        a(f"s_memrealtime s[{S_ST}:{S_ST+1}]")
    a("s_load_dwordx2 s[4:5], s[0:1], 0")
    a("s_load_dwordx4 s[8:11], s[0:1], 40")
    a("s_load_dwordx2 s[12:13], s[0:1], 56")
    a("s_load_dwordx2 s[14:15], s[0:1], 72")
    a("s_load_dwordx2 s[6:7], s[0:1], 88")
    a(f"v_lshrrev_b32 v1, 6, v0")
    a("s_nop 0")
    a(f"v_readfirstlane_b32 s{S_WV}, v1")
    a("v_lshrrev_b32 v1, 4, v0")
    a("v_bfe_u32 v2, v0, 2, 2")
    a("v_lshlrev_b32 v2, 2, v2")
    a("v_and_b32 v3, 1, v0")
    a("v_lshl_add_u32 v2, v3, 1, v2")
    a("v_bfe_u32 v3, v0, 1, 1")
    a("v_lshl_add_u32 v2, v3, 4, v2")
    a("v_mov_b32 v4, 0")
    a("v_mov_b32 v5, 0xffff")
    a("v_cmp_lt_u32 vcc, v2, v1")
    a("s_nop 1")
    a("v_cndmask_b32 v6, v4, v5, vcc")
    a("v_add_u32 v2, 1, v2")
    a("v_mov_b32 v5, 0xffff0000")
    a("v_cmp_lt_u32 vcc, v2, v1")
    a("s_nop 1")
    a("v_cndmask_b32 v7, v4, v5, vcc")
    a("v_or_b32 v6, v6, v7")
    a("v_lshlrev_b32 v8, 2, v0")
    a(f"v_add_u32 v9, {L_MASK}, v8")
    a("ds_write_b32 v9, v6")
    a("v_mov_b32 v5, -1")
    a("v_mov_b32 v6, 0x3f803f80")
    a(f"v_add_u32 v10, {L_CNT}, v8")
    a("s_mov_b64 s[46:47], exec")
    a("v_cmp_gt_u32 vcc, 80, v0")
    a("s_and_b64 exec, exec, vcc")
    a(f"ds_write_b32 v10, v6 offset:{L_ONES - L_CNT}")
    a(f"ds_write_b32 v10, v4")
    a("v_cmp_gt_u32 vcc, 16, v0")
    a("s_and_b64 exec, exec, vcc")
    a(f"ds_write_b32 v9, v5 offset:2048")
    a("s_mov_b64 exec, s[46:47]")
    a("s_waitcnt lgkmcnt(0)")
    srd(a, S_WS, 6, (WS_STAMP + (4 << 20)) if (stamps or dump) else WS_END)
    srd(a, S_X, 4, N, stride=512)
    srd(a, S_XP, 4, N * 512)
    srd(a, S_WR, 8, 2560)
    srd(a, S_W0, 10, 16384)
    srd(a, S_W1, 12, 24576)
    srd(a, S_OUT, 14, N * 512)
    a(f"s_mov_b32 s{S_SELLO}, 0x05040100")
    a(f"s_mov_b32 s{S_SELHI}, 0x07060302")
    a(f"s_lshl_b32 s{S_T}, s{S_B}, 10")
    a(f"s_lshl_b32 s{S_T+1}, s{S_WV}, 7")
    a(f"s_add_u32 s{S_T}, s{S_T}, s{S_T+1}")
    a(f"s_add_u32 s{S_T}, s{S_T}, {WS_TAB}")
    a("v_bfe_u32 v1, v0, 4, 2")
    a("v_lshlrev_b32 v1, 5, v1")
    a("v_and_b32 v2, 31, v0")
    a("v_lshlrev_b32 v2, 2, v2")
    a(f"buffer_load_dwordx4 v[{V_ENT}:{V_ENT+3}], v1, s[{S_WS}:{S_WS+3}], s{S_T} offen")
    a(f"buffer_load_dwordx4 v[{V_ENT+4}:{V_ENT+7}], v1, s[{S_WS}:{S_WS+3}], s{S_T} offen offset:16")
    a(f"buffer_load_dword v{V_SEG}, v2, s[{S_WS}:{S_WS+3}], s{S_T} offen")
    a(f"v_and_b32 v{V_I}, 15, v0")
    for i in range(80):
        a(f"v_mov_b32 v{V_P+i}, 0")
    a("s_barrier")
    a(f"s_mov_b32 s{S_MODE}, 0")
    a("s_waitcnt vmcnt(0)")
    if stamps:
        a(f"s_memrealtime s[{S_ST+2}:{S_ST+3}]")
    rnd = name + "_round"
    a.label(rnd)
    for it in range(8):
        e = V_ENT + it
        a(f"v_lshrrev_b32 v{V_X}, 20, v{e}")
        a(f"v_and_b32 v{e}, 0xfffff, v{e}")
        a(f"v_cmp_lt_u32 s[{S_VAL+2*it}:{S_VAL+2*it+1}], v{V_I}, v{V_X}")
        a(f"v_add_u32 v{e}, v{e}, v{V_I}")
        a(f"v_lshlrev_b32 v{V_RANK+it}, 4, v{e}")
    noov = name + "_noov"
    a(f"s_mov_b32 s{S_T+2}, 0")
    a(f"v_mov_b32 v{V_X+1}, 0")
    a(f"v_and_b32 v{V_X+2}, 63, v0")
    a(f"s_cmp_lg_u32 s{S_MODE}, 0")
    a(f"s_cbranch_scc1 {noov}")
    a(f"s_mov_b32 s{S_T+3}, {17 << 20}")
    a(f"v_cmp_le_u32 vcc, s{S_T+3}, v{V_SEG}")
    a(f"s_mov_b32 s{S_T+5}, 0")
    a(f"s_mov_b32 s{S_T+4}, vcc_lo")
    ovl = name + "_ovl"
    a.label(ovl)
    a(f"s_cmp_eq_u32 s{S_T+4}, 0")
    a(f"s_cbranch_scc1 {noov}")
    a(f"s_ff1_i32_b32 s{S_T+3}, s{S_T+4}")
    a(f"s_bitset0_b32 s{S_T+4}, s{S_T+3}")
    a(f"v_readlane_b32 s{S_T+5}, v{V_SEG}, s{S_T+3}")
    a("s_nop 1")
    a(f"s_lshr_b32 s{S_T+6}, s{S_T+5}, 20")
    a(f"s_sub_u32 s{S_T+6}, s{S_T+6}, 16")
    a(f"s_and_b32 s{S_T+5}, s{S_T+5}, 0xfffff")
    a(f"s_add_u32 s{S_T+5}, s{S_T+5}, 16")
    a(f"s_sub_u32 s{S_T+5}, s{S_T+5}, s{S_T+2}")
    a(f"v_subrev_u32 v{V_X+3}, s{S_T+2}, v{V_X+2}")
    a(f"v_cmp_gt_u32 vcc, s{S_T+6}, v{V_X+3}")
    a(f"v_add_u32 v{V_X+3}, s{S_T+5}, v{V_X+2}")
    a(f"s_add_u32 s{S_T+2}, s{S_T+2}, s{S_T+6}")
    a(f"v_cndmask_b32 v{V_X+1}, v{V_X+1}, v{V_X+3}, vcc")
    a(f"s_branch {ovl}")
    a.label(noov)
    a(f"v_cmp_gt_u32 s[{S_VAL+16}:{S_VAL+17}], s{S_T+2}, v{V_X+2}")
    a(f"v_lshlrev_b32 v{V_RANK+8}, 4, v{V_X+1}")
    a(f"s_mov_b32 s{S_T+3}, {WS_LOC}")
    for it in range(9):
        e = V_ENT + it if it < 8 else V_X + 1
        a(f"s_mov_b64 exec, s[{S_VAL+2*it}:{S_VAL+2*it+1}]")
        a(f"buffer_load_ubyte v{V_LOC+it}, v{e}, s[{S_WS}:{S_WS+3}], s{S_T+3} offen")
        a(f"buffer_load_dwordx4 v[{V_REC+4*it}:{V_REC+4*it+3}], v{V_RANK+it}, s[{S_WS}:{S_WS+3}], 0 offen")
    a("s_mov_b64 exec, -1")
    a(f"s_cmp_le_u32 s{S_T+2}, 64")
    nofl = name + "_nofl"
    a(f"s_cbranch_scc1 {nofl}")
    a(f"v_mov_b32 v{V_X}, {L_FLAG}")
    a(f"v_mov_b32 v{V_X+1}, 1")
    a(f"ds_write_b32 v{V_X}, v{V_X+1}")
    a.label(nofl)
    notfirst = name + "_nf"
    nvm_after = 9
    a(f"s_cmp_lg_u32 s{S_MODE}, 0")
    a(f"s_cbranch_scc1 {notfirst}")
    a("v_and_b32 v1, 63, v0")
    a("v_lshrrev_b32 v2, 3, v1")
    a("v_bfe_u32 v3, v1, 1, 2")
    a("v_bfe_u32 v4, v1, 4, 1")
    a("v_xor_b32 v3, v3, v4")
    a("v_lshlrev_b32 v2, 7, v2")
    a("v_lshl_add_u32 v2, v3, 5, v2")
    a("v_and_b32 v3, 1, v1")
    a("v_lshl_add_u32 v2, v3, 4, v2")
    a("v_xor_b32 v3, 64, v2")
    a(f"s_lshl_b32 s{S_T+3}, s{S_WV}, 11")
    a(f"s_add_u32 s{S_T+4}, s{S_T+3}, {L_W}")
    a(f"s_mov_b32 m0, s{S_T+4}")
    a(f"s_add_u32 s{S_T+5}, s{S_T+3}, 1024")
    a(f"buffer_load_dwordx4 v2, s[{S_W0}:{S_W0+3}], s{S_T+3} offen lds")
    a(f"s_add_u32 s{S_T+4}, s{S_T+4}, 1024")
    a(f"s_mov_b32 m0, s{S_T+4}")
    a("s_nop 0")
    a(f"buffer_load_dwordx4 v3, s[{S_W0}:{S_W0+3}], s{S_T+5} offen lds")
    a(f"s_mul_i32 s{S_T+3}, s{S_WV}, 3072")
    for t in range(3):
        a(f"s_add_u32 s{S_T+5}, s{S_WV}, {t}")
        a(f"s_and_b32 s{S_T+5}, s{S_T+5}, 1")
        a(f"s_lshl_b32 s{S_T+5}, s{S_T+5}, 6")
        a(f"v_xor_b32 v4, s{S_T+5}, v2")
        a(f"s_add_u32 s{S_T+5}, s{S_T+3}, {t*1024}")
        a(f"s_add_u32 s{S_T+4}, s{S_T+5}, {L_W + 16384}")
        a(f"s_mov_b32 m0, s{S_T+4}")
        a("s_nop 0")
        a(f"buffer_load_dwordx4 v4, s[{S_W1}:{S_W1+3}], s{S_T+5} offen lds")
    a.label(notfirst)
    wlab = name + "_w0"
    wj = name + "_w1"
    a(f"s_cmp_lg_u32 s{S_MODE}, 0")
    a(f"s_cbranch_scc1 {wlab}")
    a("s_waitcnt vmcnt(5)")
    a(f"s_branch {wj}")
    a.label(wlab)
    a("s_waitcnt vmcnt(0)")
    a.label(wj)
    if stamps:
        a(f"s_memrealtime s[{S_ST+4}:{S_ST+5}]")
    a(f"v_mov_b32 v{V_X}, 1")
    for it in range(9):
        a(f"v_lshlrev_b32 v{V_LOC+it}, 2, v{V_LOC+it}")
    for it in range(9):
        a(f"s_mov_b64 exec, s[{S_VAL+2*it}:{S_VAL+2*it+1}]")
        a(f"ds_add_rtn_u32 v{V_RANK+it}, v{V_LOC+it}, v{V_X} offset:{L_CNT}")
    a("s_mov_b64 exec, -1")
    radial_addr(a, 0, V_AN, V_AN + 1, V_AN + 2)
    radial_load(a, V_AN, V_WPK)
    a("s_waitcnt lgkmcnt(0)")
    a("s_barrier")
    a("v_and_b32 v1, 63, v0")
    a("v_lshlrev_b32 v2, 2, v1")
    a(f"ds_read_b32 v3, v2 offset:{L_CNT}")
    a(f"v_mov_b32 v4, {L_FLAG}")
    a("ds_read_b32 v4, v4")
    a("s_waitcnt lgkmcnt(0)")
    a("v_mov_b32 v5, v3")
    for sh, bank in ((1, 0xf), (2, 0xf), (4, 0xa)):
        a("s_nop 1")
        a(f"v_add_u32_dpp v5, v5, v5 row_shr:{sh} row_mask:0xf bank_mask:{bank:#x} bound_ctrl:0")
    a("v_add_u32 v6, 31, v5")
    a("v_and_b32 v6, 0xffffffe0, v6")
    a("v_and_b32 v7, 7, v1")
    a("v_cmp_eq_u32 vcc, 7, v7")
    a("v_mov_b32 v7, 0")
    a("s_nop 0")
    a("v_cndmask_b32 v6, v7, v6, vcc")
    wave_scan(a, 6)
    a("v_add_u32 v7, v6, v5")
    a("v_sub_u32 v7, v7, v3")
    a(f"s_lshl_b32 s{S_T}, s{S_WV}, 3")
    a("s_nop 0")
    a(f"v_readlane_b32 s{S_S}, v6, s{S_T}")
    for s in range(5):
        a(f"s_add_u32 s{S_T+1}, s{S_T}, {s}")
        a("s_nop 0")
        a(f"v_readlane_b32 s{S_ES+s}, v5, s{S_T+1}")
    a(f"v_readlane_b32 s{S_T+2}, v6, 63")
    a(f"v_readfirstlane_b32 s{S_T+3}, v4")
    a("s_nop 3")
    a(f"s_add_u32 s{S_NG}, s{S_ES+4}, 31")
    a(f"s_lshr_b32 s{S_NG}, s{S_NG}, 5")
    slow = name + "_slow"
    a(f"s_cmp_gt_u32 s{S_T+2}, {CAP}")
    a(f"s_cbranch_scc1 {slow}")
    a(f"s_cmp_lg_u32 s{S_T+3}, 0")
    a(f"s_cbranch_scc1 {slow}")
    for it in range(9):
        a(f"ds_bpermute_b32 v{V_X+it}, v{V_LOC+it}, v7")
    for it in range(9):
        a(f"s_waitcnt lgkmcnt({8-it})")
        a(f"v_add_u32 v{V_RANK+it}, v{V_RANK+it}, v{V_X+it}")
        a(f"v_lshlrev_b32 v{V_RANK+it}, 4, v{V_RANK+it}")
    for it in range(9):
        a(f"s_mov_b64 exec, s[{S_VAL+2*it}:{S_VAL+2*it+1}]")
        a(f"ds_write_b128 v{V_RANK+it}, v[{V_REC+4*it}:{V_REC+4*it+3}] offset:{L_RAW}")
    a("s_mov_b64 exec, -1")
    a(f"s_lshl_b32 s{S_T}, s{S_NG}, 5")
    a(f"s_sub_u32 s{S_T}, s{S_T}, s{S_ES+4}")
    a(f"s_add_u32 s{S_T+1}, s{S_S}, s{S_ES+4}")
    a(f"v_add_u32 v2, s{S_T+1}, v1")
    a("v_lshlrev_b32 v2, 4, v2")
    a(f"v_mov_b32 v{V_X}, 0")
    a(f"v_mov_b32 v{V_X+1}, 0")
    a(f"v_mov_b32 v{V_X+2}, 0")
    a(f"v_mov_b32 v{V_X+3}, 0xffff0000")
    a(f"v_cmp_gt_u32 vcc, s{S_T}, v1")
    a("s_and_b64 exec, exec, vcc")
    a(f"ds_write_b128 v2, v[{V_X}:{V_X+3}] offset:{L_RAW}")
    a("s_mov_b64 exec, -1")
    a("v_bfe_u32 v8, v0, 4, 2")
    a(f"v_lshlrev_b32 v9, 6, v8")
    a(f"s_lshl_b32 s{S_T}, s{S_S}, 4")
    a(f"s_add_u32 s{S_T}, s{S_T}, {L_RAW}")
    a(f"v_add_u32 v9, s{S_T}, v9")
    a(f"v_add_u32 v{V_SADDR}, 14, v9")
    a("v_and_b32 v10, 3, v0")
    a(f"v_lshl_add_u32 v{V_AADDR}, v10, 1, v9")
    a("v_bfe_u32 v10, v0, 2, 2")
    a("v_lshl_add_u32 v11, v10, 1, v9")
    a(f"v_add_u32 v11, 6, v11")
    a("v_cmp_eq_u32 vcc, 0, v10")
    a(f"v_mov_b32 v12, {L_ONES}")
    a(f"v_mov_b32 v13, 512")
    a(f"v_mov_b32 v14, 0")
    a(f"v_cndmask_b32 v{V_Y0}, v11, v12, vcc")
    a(f"v_cndmask_b32 v{V_YSTEP}, v13, v14, vcc")
    a(f"v_mov_b32 v{V_YADDR}, v{V_Y0}")
    a(f"v_lshlrev_b32 v{V_MBASE}, 4, v8")
    a(f"v_add_u32 v{V_MBASE}, {L_MASK}, v{V_MBASE}")
    a("v_and_b32 v10, 15, v0")
    a("v_lshlrev_b32 v10, 4, v10")
    for j in range(8):
        a(f"v_mov_b32 v{V_IDX+2*j+1}, v10")
    a("s_waitcnt vmcnt(0)")
    radial_unpack(a, V_WPK, V_AN + 1)
    a("s_waitcnt lgkmcnt(0)")
    a("s_barrier")
    if dump == "raw":
        dump_lds(a, name, L_RAW, 49152)
    endmain = name + "_endmain"
    a(f"s_cmp_eq_u32 s{S_NG}, 0")
    a(f"s_cbranch_scc1 {endmain}")
    for s in range(5):
        a(f"s_mov_b32 s{S_E+s}, s{S_ES+s}")
    a(f"s_mov_b32 s{S_E+5}, 0x7fffffff")
    a(f"s_mov_b32 s{S_G32}, 0")
    a(f"s_mov_b32 s{S_LG}, 0")
    a(f"s_mov_b32 s{S_SOFF}, 0")
    a(f"s_mov_b32 s{S_PIDX}, 0")
    a(f"s_mov_b32 s{S_FRESH}, 1")
    a(f"s_mov_b32 s{S_PH}, 0")
    a(f"s_mov_b32 s{S_NEWW}, 0")
    a(f"s_lshl_b32 s{S_LEFT}, s{S_NG}, 1")
    a(f"s_sub_u32 s{S_LEFT}, s{S_LEFT}, 1")
    read_idx(a)
    a("s_waitcnt lgkmcnt(0)")
    issue_x(a)
    advance_load_stream(a, name)
    l0 = a.uid(name + "_p0")
    a(f"s_cmp_lg_u32 s{S_LG}, 0")
    a(f"s_cbranch_scc1 {l0}")
    a(f"s_movk_i32 s{S_SOFF}, 256")
    a.label(l0)
    read_idx(a)
    a_build(a)
    loop = name + "_loop"
    a.label(loop)
    a("s_waitcnt vmcnt(0)")
    nw = a.uid(name + "_keepw")
    a(f"s_cmp_eq_u32 s{S_NEWW}, 0")
    a(f"s_cbranch_scc1 {nw}")
    radial_unpack(a, V_FRAG + 16, V_X + 5)
    a(f"s_mov_b32 s{S_NEWW}, 0")
    a.label(nw)
    for f in range(8):
        dd, hi = f >> 1, f & 1
        for i in range(4):
            a(f"v_perm_b32 v{V_FRAG+4*f+i}, v{V_RAW+(2*i+1)*4+dd}, v{V_RAW+(2*i)*4+dd}, s{S_SELHI if hi else S_SELLO}")
    noiss = a.uid(name + "_noiss")
    a(f"s_cmp_eq_u32 s{S_LEFT}, 0")
    a(f"s_cbranch_scc1 {noiss}")
    a("s_waitcnt lgkmcnt(0)")
    issue_x(a)
    a(f"s_sub_u32 s{S_LEFT}, s{S_LEFT}, 1")
    advance_load_stream(a, name)
    l1 = a.uid(name + "_p1")
    a(f"s_cmp_lg_u32 s{S_LG}, 0")
    a(f"s_cbranch_scc1 {l1}")
    a(f"s_movk_i32 s{S_SOFF}, 256")
    a.label(l1)
    read_idx(a)
    a.label(noiss)
    a(f"s_add_u32 s{S_GEND}, s{S_G32}, 32")
    bl = name + "_bl"
    tail = name + "_tail"
    a.label(bl)
    a(f"s_cmp_gt_u32 s{S_E}, s{S_GEND}")
    a(f"s_cbranch_scc1 {tail}")
    a(f"s_sub_u32 s{S_T}, s{S_E}, s{S_G32}")
    a(f"s_lshl_b32 s{S_T}, s{S_T}, 6")
    a(f"v_add_u32 v{V_TMP}, s{S_T}, v{V_MBASE}")
    a(f"ds_read_b128 v[{V_M}:{V_M+3}], v{V_TMP}")
    a("s_waitcnt lgkmcnt(0)")
    for i in range(4):
        a(f"v_and_b32 v{V_AN+i}, v{V_A+i}, v{V_M+i}")
    for i in range(4):
        a(f"v_xor_b32 v{V_A+i}, v{V_A+i}, v{V_AN+i}")
    bf, bj = a.uid(name + "_bf"), a.uid(name + "_bj")
    a(f"s_cmp_lg_u32 s{S_FRESH}, 0")
    a(f"s_cbranch_scc1 {bf}")
    mfma_block(a, V_AN, False)
    a(f"s_branch {bj}")
    a.label(bf)
    mfma_block(a, V_AN, True)
    a.label(bj)
    a("s_nop 1")
    T = [V_X + f for f in range(8)]
    for f in range(8):
        ac, w = V_ACC + 4 * f, V_W + 4 * f
        a(f"v_mul_f32 v{T[f]}, v{ac}, v{w}")
        for d in range(1, 4):
            a(f"v_fmac_f32 v{T[f]}, v{ac+d}, v{w+d}")
    a(f"s_set_gpr_idx_on s{S_PIDX}, gpr_idx(SRC0,DST)")
    a("s_nop 0")
    for f in range(8):
        a(f"v_add_f32 v{V_P+f}, v{V_P+f}, v{T[f]}")
    a("s_set_gpr_idx_off")
    a(f"s_add_u32 s{S_PIDX}, s{S_PIDX}, 8")
    for s in range(5):
        a(f"s_mov_b32 s{S_E+s}, s{S_E+s+1}")
    a(f"s_mov_b32 s{S_FRESH}, 1")
    a(f"s_branch {bl}")
    a.label(tail)
    tskip, tf, tj = a.uid(name + "_ts"), a.uid(name + "_tf"), a.uid(name + "_tj")
    a(f"s_cmp_eq_u32 s{S_E}, 0x7fffffff")
    a(f"s_cbranch_scc1 {tskip}")
    a(f"s_cmp_lg_u32 s{S_FRESH}, 0")
    a(f"s_cbranch_scc1 {tf}")
    mfma_block(a, V_A, False)
    a(f"s_branch {tj}")
    a.label(tf)
    mfma_block(a, V_A, True)
    a(f"s_mov_b32 s{S_FRESH}, 0")
    a.label(tj)
    a.label(tskip)
    a(f"s_mov_b32 s{S_G32}, s{S_GEND}")
    a(f"s_lshl_b32 s{S_T}, s{S_NG}, 5")
    a(f"s_cmp_lt_u32 s{S_G32}, s{S_T}")
    nxt = a.uid(name + "_nxt")
    a(f"s_cbranch_scc1 {nxt}")
    a(f"s_cmp_lg_u32 s{S_PH}, 0")
    a(f"s_cbranch_scc1 {endmain}")
    a(f"s_mov_b32 s{S_PH}, 1")
    a(f"s_mov_b32 s{S_G32}, 0")
    for s in range(5):
        a(f"s_mov_b32 s{S_E+s}, s{S_ES+s}")
    a(f"s_mov_b32 s{S_E+5}, 0x7fffffff")
    a(f"s_mov_b32 s{S_PIDX}, 40")
    a(f"s_mov_b32 s{S_FRESH}, 1")
    a(f"s_lshl_b32 s{S_T+1}, s{S_NG}, 9")
    a(f"v_subrev_u32 v{V_AADDR}, s{S_T+1}, v{V_AADDR}")
    a(f"v_mov_b32 v{V_YADDR}, v{V_Y0}")
    radial_addr(a, 1, V_X + 4, V_X + 5, V_X + 6)
    radial_load(a, V_X + 4, V_FRAG + 16)
    a(f"s_mov_b32 s{S_NEWW}, 1")
    a.label(nxt)
    a_build(a)
    a(f"s_branch {loop}")
    a.label(endmain)
    epi = name + "_epi"
    a(f"s_cmp_eq_u32 s{S_MODE}, 0")
    a(f"s_cbranch_scc1 {epi}")
    a(f"s_add_u32 s{S_RND}, s{S_RND}, 1")
    a(f"s_cmp_ge_u32 s{S_RND}, {G1}")
    a(f"s_cbranch_scc1 {epi}")
    nextround = name + "_nextround"
    a(f"s_branch {nextround}")
    a.label(slow)
    a(f"s_mov_b32 s{S_MODE}, 1")
    a(f"s_mov_b32 s{S_RND}, 0")
    a.label(nextround)
    a("s_waitcnt vmcnt(0) lgkmcnt(0)")
    a("s_barrier")
    a("v_lshlrev_b32 v1, 2, v0")
    a(f"v_add_u32 v1, {L_CNT}, v1")
    a("v_mov_b32 v2, 0")
    a("v_cmp_gt_u32 vcc, 80, v0")
    a("s_and_b64 exec, exec, vcc")
    a("ds_write_b32 v1, v2")
    a("s_mov_b64 exec, -1")
    a(f"s_lshl_b32 s{S_T}, s{S_B}, 10")
    a(f"s_lshl_b32 s{S_T+1}, s{S_RND}, 2")
    a(f"s_add_u32 s{S_T}, s{S_T}, s{S_T+1}")
    a(f"s_add_u32 s{S_T}, s{S_T}, {WS_TAB}")
    a("v_mov_b32 v1, 0")
    a(f"buffer_load_dword v1, v1, s[{S_WS}:{S_WS+3}], s{S_T} offen")
    a("s_waitcnt vmcnt(0) lgkmcnt(0)")
    a("v_lshrrev_b32 v2, 20, v1")
    a("v_and_b32 v1, 0xfffff, v1")
    for it in range(8):
        a(f"v_subrev_u32 v3, {it*K2_THREADS}, v2")
        a(f"v_max_i32 v3, 0, v3")
        a(f"v_min_u32 v3, {K2_THREADS}, v3")
        a(f"v_add_u32 v4, {it*K2_THREADS}, v1")
        a(f"v_lshl_or_b32 v{V_ENT+it}, v3, 20, v4")
    a(f"v_mov_b32 v{V_I}, v0")
    a("s_barrier")
    a(f"s_branch {rnd}")
    a.label(epi)
    a("s_waitcnt vmcnt(0) lgkmcnt(0)")
    a("s_barrier")
    a("v_bfe_u32 v1, v0, 4, 2")
    a("v_and_b32 v2, 15, v0")
    a("v_lshlrev_b32 v3, 7, v1")
    a("v_lshrrev_b32 v4, 3, v2")
    a("v_lshl_add_u32 v3, v4, 9, v3")
    a("v_and_b32 v4, 7, v2")
    a("v_lshl_add_u32 v3, v4, 4, v3")
    a(f"s_mul_i32 s{S_T}, s{S_WV}, {5*P_PITCH}")
    a(f"v_add_u32 v3, s{S_T}, v3")
    for s in range(5):
        for ph in range(2):
            p = V_P + ph * 40 + s * 8
            t = V_RAW + 4 * ((2 * s + ph) % 8)
            for i in range(4):
                a(f"v_cvt_pk_bf16_f32 v{t+i}, v{p+2*i}, v{p+2*i+1}")
            a(f"ds_write_b128 v3, v[{t}:{t+3}] offset:{L_P + s*P_PITCH + ph*1024}")
    if dump == "p":
        a("s_waitcnt lgkmcnt(0)")
        a("s_barrier")
        dump_lds(a, name, L_P, 40 * P_PITCH)
    a(f"s_lshr_b32 s{S_T}, s{S_WV}, 1")
    a(f"s_and_b32 s{S_T+1}, s{S_WV}, 1")
    a("v_bfe_u32 v4, v0, 2, 2")
    a("v_and_b32 v5, 3, v0")
    a("v_lshl_add_u32 v6, v1, 3, v4")
    a("v_lshlrev_b32 v6, 7, v6")
    a("v_lshl_add_u32 v6, v5, 3, v6")
    a("v_lshrrev_b32 v7, 1, v4")
    a("v_and_b32 v8, 1, v1")
    a("v_lshl_add_u32 v7, v8, 1, v7")
    a(f"s_lshl_b32 s{S_T+2}, s{S_T+1}, 1")
    a(f"v_xor_b32 v8, s{S_T+2}, v7")
    a("v_lshl_add_u32 v10, v8, 5, v6")
    a("v_xor_b32 v11, 32, v10")
    a(f"v_add_u32 v10, {L_W}, v10")
    a(f"v_add_u32 v11, {L_W}, v11")
    a(f"s_movk_i32 s{S_T+2}, {P_PITCH}")
    a(f"v_mul_u32_u24 v12, s{S_T+2}, v2")
    a("v_lshl_add_u32 v12, v1, 4, v12")
    sl_consts = []
    for og in range(4):
        k = 0
        for si in range(4):
            k |= OG_SLICES[og][si] << (4 * si)
        sl_consts.append(k)
    allsl = sum(c << (16 * og) for og, c in enumerate(sl_consts))
    SL = 64
    a(f"s_mov_b32 s88, {allsl & 0xffffffff}")
    a(f"s_mov_b32 s89, {allsl >> 32}")
    a(f"s_lshl_b32 s90, s{S_T}, 4")
    a(f"s_lshr_b64 s[88:89], s[88:89], s90")
    for si in range(4):
        a(f"s_bfe_u32 s{SL+si}, s88, {(4*si) | (4 << 16)}")
        a(f"s_lshl_b32 s{SL+si}, s{SL+si}, 7")
    a(f"s_cmp_eq_u32 s{S_T}, 0")
    for si in range(4):
        a(f"s_mov_b32 s90, {OG_WROWS[1][si]}")
        a(f"s_cselect_b32 s{SL+4+si}, {OG_WROWS[0][si]}, s90")
    OA = V_ACC
    for i in range(24):
        a(f"v_mov_b32 v{OA+i}, 0")
    a("s_waitcnt lgkmcnt(0)")
    a("s_barrier")
    AF, BF = V_FRAG, V_FRAG + 16
    for si in range(4):
        a(f"v_add_u32 v13, s{SL+4+si}, v10")
        a(f"v_add_u32 v14, s{SL+4+si}, v11")
        a(f"v_add_u32 v15, s{SL+si}, v12")
        a(f"v_add_u32 v16, {2*16*P_PITCH}, v15")
        for ks in range(2):
            af = AF + 8 * ks
            bf_ = (BF if ks == 0 else V_RAW)
            for hf in range(2):
                for rd in range(2):
                    a(f"ds_read_b64_tr_b16 v[{af+4*hf+2*rd}:{af+4*hf+2*rd+1}], v{13+hf} offset:{rd*512 + ks*4096}")
            a(f"ds_read_b128 v[{bf_}:{bf_+3}], v15 offset:{L_P + ks*64}")
            a(f"ds_read_b128 v[{bf_+4}:{bf_+7}], v15 offset:{L_P + 16*P_PITCH + ks*64}")
            a(f"ds_read_b128 v[{bf_+8}:{bf_+11}], v16 offset:{L_P + ks*64}")
        for ks in range(2):
            af = AF + 8 * ks
            bf_ = (BF if ks == 0 else V_RAW)
            a(f"s_waitcnt lgkmcnt({7 if ks == 0 else 0})")
            for mt in range(3):
                for hf in range(2):
                    o = OA + 8 * mt + 4 * hf
                    a(f"v_mfma_f32_16x16x32_bf16 v[{o}:{o+3}], v[{af+4*hf}:{af+4*hf+3}], v[{bf_+4*mt}:{bf_+4*mt+3}], v[{o}:{o+3}]")
    a(f"s_movk_i32 s90, {G_PITCH}")
    a("v_mul_u32_u24 v13, s90, v2")
    a("v_lshl_add_u32 v13, v1, 4, v13")
    a(f"s_lshl_b32 s90, s{S_T+1}, 7")
    a("v_add_u32 v13, s90, v13")
    a(f"v_add_u32 v13, {L_GATE}, v13")
    notog0, gj = a.uid(name + "_nog0"), a.uid(name + "_gj")
    a("s_nop 7")
    a(f"s_cmp_lg_u32 s{S_T}, 0")
    a(f"s_cbranch_scc1 {notog0}")
    a("s_mov_b32 s90, 0xbfb8aa3b")
    for mt in range(3):
        for hf in range(2):
            o = OA + 8 * mt + 4 * hf
            g = V_RAW + 4 * (2 * mt + hf)
            for r in range(4):
                a(f"v_mul_f32 v{g+r}, s90, v{o+r}")
            for r in range(4):
                a(f"v_exp_f32 v{g+r}, v{g+r}")
            a("s_nop 0")
            for r in range(4):
                a(f"v_add_f32 v{g+r}, 1.0, v{g+r}")
            for r in range(4):
                a(f"v_rcp_f32 v{g+r}, v{g+r}")
            a("s_nop 0")
            a(f"ds_write_b128 v13, v[{g}:{g+3}] offset:{mt*16*G_PITCH + hf*64}")
    a("s_waitcnt lgkmcnt(0)")
    a("s_barrier")
    a(f"s_branch {gj}")
    a.label(notog0)
    a("s_barrier")
    for mt in range(3):
        for hf in range(2):
            g = V_RAW + 4 * (2 * mt + hf)
            a(f"ds_read_b128 v[{g}:{g+3}], v13 offset:{mt*16*G_PITCH + hf*64}")
    for mt in range(3):
        for hf in range(2):
            o = OA + 8 * mt + 4 * hf
            g = V_RAW + 4 * (2 * mt + hf)
            a(f"s_waitcnt lgkmcnt({5 - (2*mt+hf)})")
            for r in range(4):
                a(f"v_mul_f32 v{o+r}, v{o+r}, v{g+r}")
    a.label(gj)
    a(f"s_mul_i32 s88, s{S_B}, 625")
    a("s_add_u32 s89, s88, 15")
    a("s_lshr_b32 s89, s89, 4")
    a("s_add_u32 s88, s88, 640")
    a("s_lshr_b32 s88, s88, 4")
    a("s_sub_u32 s88, s88, s89")
    a("s_sub_u32 s88, s88, 32")
    a("s_lshl_b32 s89, s89, 9")
    a(f"s_lshl_b32 s90, s{S_T}, 7")
    a("s_add_u32 s89, s89, s90")
    a(f"s_lshl_b32 s90, s{S_T+1}, 6")
    a("s_add_u32 s89, s89, s90")
    a("v_lshlrev_b32 v13, 9, v2")
    a("v_lshl_add_u32 v13, v1, 3, v13")
    a(f"v_add_u32 v14, {16*512}, v13")
    a(f"v_add_u32 v15, {32*512}, v13")
    for mt in range(3):
        for hf in range(2):
            o = OA + 8 * mt + 4 * hf
            t = V_FRAG + 2 * (2 * mt + hf)
            a(f"v_cvt_pk_bf16_f32 v{t}, v{o}, v{o+1}")
            a(f"v_cvt_pk_bf16_f32 v{t+1}, v{o+2}, v{o+3}")
    a("v_cmp_gt_u32 vcc, s88, v2")
    for mt in range(3):
        if mt == 2:
            a("s_and_b64 exec, exec, vcc")
        for hf in range(2):
            t = V_FRAG + 2 * (2 * mt + hf)
            a(f"buffer_store_dwordx2 v[{t}:{t+1}], v{13+mt}, s[{S_OUT}:{S_OUT+3}], s89 offen offset:{hf*32}")
    a.label(done)
    a("s_endpgm")
    kernel_desc(a, name, 256, sgpr=102)
    return (name, 256, 102, K2_THREADS)


def dump_lds(a, name, base, nbytes):
    a("v_lshlrev_b32 v1, 4, v0")
    a(f"s_mul_i32 s88, s2, 98304")
    a(f"s_add_u32 s88, s88, {WS_STAMP}")
    n = (nbytes + 8191) // 8192
    for i in range(n):
        a(f"v_add_u32 v2, {i*8192}, v1")
        a(f"ds_read_b128 v[8:11], v2 offset:{base}")
        a("s_waitcnt lgkmcnt(0)")
        a(f"buffer_store_dwordx4 v[8:11], v2, s[{S_WS}:{S_WS+3}], s88 offen")
        a("s_waitcnt vmcnt(0)")
    a("s_endpgm")


if __name__ == "__main__":
    from gen_k1 import gen_k1
    a = Asm()
    a('.amdgcn_target "amdgcn-amd-amdhsa--gfx950"')
    ks = [gen_k1(a, "part_kernel", stflag="nt"), gen_k2(a, "main_kernel")]
    metadata(a, ks, 96)
    open("k12.s", "w").write(a.text())
```

```python
import sys
from asmlib import *
import gen_k1 as g1, gen_k2 as g2
REF = "gather_scatter__tensor_product_equiv_equiformer__graph.s.ref"
def header(launches):
    out = []
    for ln in open(REF).read().split("\n"):
        if ln.startswith("; Override launch geometry"):
            break
        out.append(ln)
    for k, grid, blk, lds in launches:
        out.append(f"; @launch kernel={k} grid=({grid},1,1) block=({blk},1,1) lds={lds}")
    return "\n".join(out) + "\n"
def build(path, k1opts=None, k2opts=None):
    a = Asm()
    a('.amdgcn_target "amdgcn-amd-amdhsa--gfx950"')
    g1.gen_k1(a, "part_kernel", **(k1opts or dict(stflag="sc1", ldflag="nt", pfcode=("main_kernel", "main_kernel_done", True), pfself=True)))
    g2.gen_k2(a, "main_kernel", **(k2opts or dict(prio=(4,), stflag="sc1", pf2=32)))
    txt = header([("part_kernel", g1.G1, g1.K1_THREADS, g1.K1_LDS_ST), ("main_kernel", g1.NBK, g2.K2_THREADS, g2.K2_LDS)]) + a.text()
    open(path, "w").write(txt)
if __name__ == "__main__":
    build(sys.argv[1] if len(sys.argv) > 1 else "gather_scatter__tensor_product_equiv_equiformer__graph.s")
```

```python
import sys
from asmlib import *
import gen_k1 as g1, gen_k2 as g2
from gen_final import header
def build(path, seq, k1opts=None, k2opts=None):
    a = Asm()
    a('.amdgcn_target "amdgcn-amd-amdhsa--gfx950"')
    g1.gen_k1(a, "part_kernel", **(k1opts or dict(stflag="nt")))
    g2.gen_k2(a, "main_kernel", **(k2opts or {}))
    kernel_header(a, "empty_kernel"); a("s_endpgm"); kernel_desc(a, "empty_kernel", 8, sgpr=16)
    L = {"p": ("part_kernel", g1.G1, g1.K1_THREADS, g1.K1_LDS_ST), "m": ("main_kernel", g1.NBK, g2.K2_THREADS, g2.K2_LDS), "e": ("empty_kernel", 1, 64, 0)}
    open(path, "w").write(header([L[c] for c in seq]) + a.text())
if __name__ == "__main__":
    for seq in ("pm", "pme", "epm", "ppm", "pmm", "pmeee"):
        build(f"var_{seq}.s", seq)
```

```python
from asmlib import *

E = 640000
N = 10000
G1 = 256
CH = 2500
NBK = 256
WS_REC = 0
WS_LOC = E * 16
WS_TAB = WS_LOC + E
WS_L32 = WS_TAB + NBK * G1 * 4
WS_END = WS_L32 + NBK * G1 * 32
WS_STAMP = 14 * 1024 * 1024
K1_THREADS = 640
K1_LDS = 6144
L_HIST, L_BASE, L_LOC, L_REC = 0, 2560, 3584, 6144
L_L32 = L_REC + 4 * K1_THREADS * 16
K1_LDS_ST = L_L32 + 8192


def srd(a, base, ptr, size, stride=0):
    a(f"s_mov_b32 s{base}, s{ptr}")
    a(f"s_and_b32 s{base+1}, s{ptr+1}, 0xffff")
    if stride:
        a(f"s_or_b32 s{base+1}, s{base+1}, {stride << 16}")
    a(f"s_mov_b32 s{base+2}, {size}")
    a(f"s_mov_b32 s{base+3}, 0x20000")


def wave_scan(a, v):
    for sh in (1, 2, 4, 8):
        a("s_nop 1")
        a(f"v_add_u32_dpp v{v}, v{v}, v{v} row_shr:{sh} row_mask:0xf bank_mask:0xf bound_ctrl:0")
    a("s_nop 1")
    a(f"v_add_u32_dpp v{v}, v{v}, v{v} row_bcast:15 row_mask:0xa bank_mask:0xf")
    a("s_nop 1")
    a(f"v_add_u32_dpp v{v}, v{v}, v{v} row_bcast:31 row_mask:0xc bank_mask:0xf")


def stamp(a, sreg):
    a(f"s_memrealtime s[{sreg}:{sreg+1}]")


def prefetch_x_share(a, name, lines):
    a("s_load_dwordx2 s[76:77], s[0:1], 0")
    a("s_mov_b64 s[54:55], exec")
    a("s_mov_b64 exec, -1")
    a("s_lshr_b32 s56, s2, 3")
    a(f"s_mul_i32 s56, s56, {313*512}")
    a("v_lshrrev_b32 v68, 1, v0")
    a("v_lshlrev_b32 v68, 9, v68")
    a("v_and_b32 v69, 1, v0")
    a("v_lshl_add_u32 v68, v69, 7, v68")
    a(f"s_movk_i32 s57, {lines}")
    a("v_cmp_gt_u32 s[58:59], s57, v0")
    a("s_waitcnt lgkmcnt(0)")
    srd(a, 76, 76, N * 512)
    a("s_mov_b64 exec, s[58:59]")
    lab = name + "_nopfxl"
    a(f"s_cbranch_execz {lab}")
    a("buffer_load_dword v77, v68, s[76:79], s56 offen")
    a.label(lab)
    a("s_mov_b64 exec, s[54:55]")


def gen_k1(a, name, stamps=False, staged=True, stflag='', dbg=False, ldflag='', pfx=False, touch=None, pfcode=None, pfself=False, pfxl=None):
    a("; =====================================================================================")
    a("; =====================================================================================")
    kernel_header(a, name)
    done = name + "_done"
    a(f"s_cmp_ge_u32 s2, {G1}")
    a(f"s_cbranch_scc1 {done}")
    if stamps or dbg:
        stamp(a, 60)
    if dbg:
        a("s_load_dwordx2 s[70:71], s[0:1], 80")
    a("s_load_dwordx4 s[4:7], s[0:1], 8")
    a("s_load_dwordx4 s[8:11], s[0:1], 24")
    a("s_load_dwordx2 s[12:13], s[0:1], 88")
    if pfself:
        a("s_getpc_b64 s[72:73]")
        a(f"{name}_pc0:")
        a("v_lshlrev_b32 v69, 6, v0")
        a(f"s_mov_b32 s57, {name}_done-{name}_pc0")
        a("v_mov_b32 v71, s73")
        a("v_cmp_gt_u32 s[58:59], s57, v69")
        a("v_add_co_u32 v70, s[52:53], s72, v69")
        a("s_nop 1")
        a("v_addc_co_u32 v71, s[52:53], 0, v71, s[52:53]")
        a("s_mov_b64 exec, s[58:59]")
        a(f"s_cbranch_execz {name}_noself")
        a("global_load_dword v72, v[70:71], off")
        a.label(name + "_noself")
        a("s_mov_b64 exec, -1")
    a("v_lshlrev_b32 v1, 2, v0")
    a("v_mov_b32 v2, 0")
    a("ds_write_b32 v1, v2")
    a("v_lshlrev_b32 v3, 4, v0")
    a("v_lshlrev_b32 v4, 5, v0")
    a("v_mul_u32_u24 v5, 24, v0")
    a(f"s_mul_i32 s14, s2, {CH*4}")
    a(f"s_mul_i32 s15, s2, {CH*8}")
    a(f"s_mul_i32 s16, s2, {CH*6}")
    a(f"s_mul_i32 s17, s2, {CH}")
    a(f"s_mul_i32 s18, s2, {CH*16}")
    a(f"v_cmp_gt_u32 vcc, {CH//4}, v0")
    a("s_waitcnt lgkmcnt(0)")
    srd(a, 20, 10, E * 4)
    srd(a, 24, 8, E * 4)
    srd(a, 28, 6, E * 8)
    srd(a, 32, 4, E * 6)
    srd(a, 36, 12, WS_STAMP + 65536 if (stamps or dbg) else WS_END)
    a("s_and_saveexec_b64 s[40:41], vcc")
    a(f"buffer_load_dwordx4 v[8:11], v3, s[20:23], s14 offen {ldflag}")
    a(f"buffer_load_dwordx4 v[12:15], v3, s[24:27], s14 offen {ldflag}")
    a(f"buffer_load_dwordx4 v[16:19], v4, s[28:31], s15 offen {ldflag}")
    a(f"buffer_load_dwordx4 v[20:23], v4, s[28:31], s15 offen offset:16 {ldflag}")
    a(f"buffer_load_dwordx4 v[24:27], v5, s[32:35], s16 offen {ldflag}")
    a(f"buffer_load_dwordx2 v[28:29], v5, s[32:35], s16 offen offset:16 {ldflag}")
    if pfcode:
        label, endlabel = pfcode[0], pfcode[1]
        a("s_mov_b64 s[54:55], exec")
        a("s_mov_b64 exec, -1")
        a("s_lshr_b32 s56, s2, 3")
        a("v_and_b32 v68, 63, v0")
        a("s_getpc_b64 s[72:73]")
        a(f"{name}_pc:")
        a(f"s_add_u32 s72, s72, {label}-{name}_pc")
        a("s_addc_u32 s73, s73, 0")
        first = pfcode[3] if len(pfcode) > 3 else 0
        if first:
            a("v_lshlrev_b32 v69, 6, v0")
            a(f"s_mov_b32 s57, {endlabel}-{label}")
            a("v_cmp_gt_u32 s[58:59], s57, v69")
            a("s_nop 3")
            a(f"s_cmp_lt_u32 s2, {first}")
            a("s_cselect_b64 s[58:59], s[58:59], 0")
        else:
            a("s_lshl_b32 s57, s56, 3")
            a("v_add_u32 v69, s57, v68")
            a("v_lshlrev_b32 v69, 6, v69")
            a(f"s_mov_b32 s57, {endlabel}-{label}")
            a("v_cmp_gt_u32 s[58:59], s57, v69")
            a("v_cmp_gt_u32 s[52:53], 8, v0")
            a("s_and_b64 s[58:59], s[58:59], s[52:53]")
        a("v_mov_b32 v71, s73")
        a("v_add_co_u32 v70, s[52:53], s72, v69")
        a("s_nop 1")
        a("v_addc_co_u32 v71, s[52:53], 0, v71, s[52:53]")
        a("s_mov_b64 exec, s[58:59]")
        lab2 = name + "_nocode"
        a(f"s_cbranch_execz {lab2}")
        a("global_load_dword v73, v[70:71], off")
        a.label(lab2)
        a("s_mov_b64 exec, -1")
        if len(pfcode) > 2 and pfcode[2]:
            a("s_load_dwordx4 s[72:75], s[0:1], 40")
            a("s_load_dwordx2 s[76:77], s[0:1], 56")
            a("v_subrev_u32 v70, 64, v0")
            a("s_mul_i32 s57, s56, 6")
            a("v_add_u32 v70, s57, v70")
            a("v_lshlrev_b32 v70, 7, v70")
            a("v_subrev_u32 v71, 64, v0")
            a("v_cmp_gt_u32 s[58:59], 6, v71")
            a("s_waitcnt lgkmcnt(0)")
            a("s_mov_b32 s48, s74"); a("s_and_b32 s49, s75, 0xffff"); a("s_mov_b32 s50, 16384"); a("s_mov_b32 s51, 0x20000")
            srd(a, 76, 76, 24576)
            srd(a, 72, 72, 2560)
            a("s_mov_b64 exec, s[58:59]")
            lab3 = name + "_now"
            a(f"s_cbranch_execz {lab3}")
            a("buffer_load_dword v74, v70, s[48:51], 0 offen")
            a("buffer_load_dword v75, v70, s[76:79], 0 offen")
            a("buffer_load_dword v76, v70, s[72:75], 0 offen")
            a.label(lab3)
        a("s_mov_b64 exec, s[54:55]")
    if touch:
        stride, nwg = touch
        lab = name + "_notouch"
        a(f"s_cmp_ge_u32 s2, {nwg}")
        a(f"s_cbranch_scc1 {lab}")
        a("s_load_dwordx2 s[76:77], s[0:1], 0")
        a("s_load_dwordx2 s[72:73], s[0:1], 72")
        a("s_waitcnt lgkmcnt(0)")
        a("s_mov_b64 s[54:55], exec")
        a("s_mov_b64 exec, -1")
        a(f"v_mul_u32_u24 v68, {stride}, v0") if stride < (1 << 16) else (a(f"s_mov_b32 s56, {stride}"), a("v_mul_lo_u32 v68, s56, v0"))
        srd(a, 76, 76, N * 512)
        a("buffer_load_dword v69, v68, s[76:79], 0 offen")
        srd(a, 72, 72, N * 512)
        a("buffer_load_dword v70, v68, s[72:75], 0 offen")
        a("buffer_load_dword v71, v68, s[36:39], 0 offen")
        a("s_mov_b64 exec, s[54:55]")
        a.label(lab)
    if pfx:
        a("s_load_dwordx2 s[76:77], s[0:1], 0")
        a("s_waitcnt lgkmcnt(0)")
        srd(a, 76, 76, N * 512)
        a(f"s_mul_i32 s19, s2, {N*512//G1}")
        a("v_lshlrev_b32 v68, 7, v0")
        a(f"s_movk_i32 s52, {N*512//G1}")
        a("v_cmp_gt_u32 s[52:53], s52, v68")
        a("s_mov_b64 s[54:55], exec")
        a("s_and_b64 exec, exec, s[52:53]")
        lab = name + "_nopfx"
        a(f"s_cbranch_execz {lab}")
        a("buffer_load_dword v69, v68, s[76:79], s19 offen")
        a.label(lab)
        a("s_mov_b64 exec, s[54:55]")
    a("s_mov_b32 s19, 429497")
    a("s_movk_i32 s42, 625")
    a("s_movk_i32 s43, 205")
    a("v_mov_b32 v2, 1")
    a("s_barrier")
    a("s_waitcnt vmcnt(5)")
    if stamps or dbg:
        stamp(a, 62)
    for k in range(4):
        d = 8 + k
        a(f"v_mul_u32_u24 v{30+k}, s19, v{d}")
        a(f"v_lshrrev_b32 v{30+k}, 24, v{30+k}")
    for k in range(4):
        a(f"v_mad_u32_u24 v{42+k}, v{30+k}, s42, 15")
        a(f"v_lshrrev_b32 v{42+k}, 4, v{42+k}")
        a(f"v_sub_u32 v{42+k}, v{8+k}, v{42+k}")
        a(f"v_lshlrev_b32 v{30+k}, 2, v{30+k}")
        a(f"ds_add_rtn_u32 v{38+k}, v{30+k}, v2")
    for k in range(4):
        a(f"v_mov_b32 v{34+k}, v{42+k}")
    a("s_waitcnt lgkmcnt(0)")
    a("s_barrier")
    a("s_mov_b64 exec, -1")
    a("v_and_b32 v6, 63, v0")
    a("v_lshlrev_b32 v7, 4, v6")
    a(f"ds_read_b128 v[44:47], v7 offset:{L_HIST}")
    a("s_waitcnt lgkmcnt(0)")
    a("v_add_u32 v48, v44, v45")
    a("v_add_u32 v49, v48, v46")
    a("v_add_u32 v50, v49, v47")
    a("v_mov_b32 v51, v50")
    wave_scan(a, 51)
    a("v_sub_u32 v52, v51, v50")
    a("v_add_u32 v53, v52, v44")
    a("v_add_u32 v54, v52, v48")
    a("v_add_u32 v55, v52, v49")
    a(f"ds_write_b128 v7, v[52:55] offset:{L_BASE}")
    for k in range(4):
        a(f"v_add_u32 v{60+k}, s17, v{52+k}")
        a(f"v_lshl_or_b32 v{60+k}, v{44+k}, 20, v{60+k}")
    a("s_waitcnt lgkmcnt(0)")
    a("s_mov_b64 exec, s[40:41]")
    a("s_and_b64 exec, exec, vcc")
    for k in range(4):
        a(f"ds_read_b32 v{44+k}, v{30+k} offset:{L_BASE}")
    a("s_waitcnt lgkmcnt(0)")
    for k in range(4):
        a(f"v_lshl_add_u32 v{48+k}, v{30+k}, 3, v{38+k}")
        a(f"v_cmp_gt_u32 s[{52+2*k}:{53+2*k}], 32, v{38+k}")
    for k in range(4):
        a(f"v_add_u32 v{38+k}, v{38+k}, v{44+k}")
        a(f"ds_write_b8 v{38+k}, v{34+k} offset:{L_LOC}")
    a("s_mov_b64 s[50:51], exec")
    for k in range(4):
        a(f"s_and_b64 exec, s[50:51], s[{52+2*k}:{53+2*k}]")
        a(f"ds_write_b8 v{48+k}, v{34+k} offset:{L_L32}")
    a("s_mov_b64 exec, s[50:51]")
    if stamps:
        stamp(a, 64)
    a("s_waitcnt vmcnt(0)")
    if stamps or dbg:
        stamp(a, 66)
    a("s_mov_b32 s44, 0x05040100")
    a("s_mov_b32 s45, 0x05040302")
    R = 24
    for k in range(4):
        r = 44 + 4 * k
        a(f"v_mov_b32 v{r}, v{16+2*k}")
        a(f"v_mov_b32 v{r+1}, v{17+2*k}")
    a(f"v_mov_b32 v46, v{R}")
    a(f"v_perm_b32 v47, v12, v{R+1}, s44")
    a(f"v_alignbit_b32 v50, v{R+2}, v{R+1}, 16")
    a(f"v_perm_b32 v51, v13, v{R+2}, s45")
    a(f"v_mov_b32 v54, v{R+3}")
    a(f"v_perm_b32 v55, v14, v{R+4}, s44")
    a(f"v_alignbit_b32 v58, v{R+5}, v{R+4}, 16")
    a(f"v_perm_b32 v59, v15, v{R+5}, s45")
    for k in range(4):
        a(f"v_lshlrev_b32 v{38+k}, 4, v{38+k}")
    if not staged:
        for k in range(4):
            r = 44 + 4 * k
            a(f"buffer_store_dwordx4 v[{r}:{r+3}], v{38+k}, s[36:39], s18 offen {stflag}")
    else:
        for k in range(4):
            r = 44 + 4 * k
            a(f"ds_write_b128 v{38+k}, v[{r}:{r+3}] offset:{L_REC}")
        a("s_waitcnt lgkmcnt(0)")
        if pfxl and pfxl[1] == "early":
            prefetch_x_share(a, name, pfxl[0])
        a("s_barrier")
        a(f"ds_read_b32 v7, v1 offset:{L_LOC}")
        a("s_mov_b64 s[50:51], exec")
        a("s_mov_b64 exec, -1")
        a(f"ds_read_b128 v[64:67], v3 offset:{L_L32}")
        for k in range(4):
            a(f"ds_read_b128 v[{44+4*k}:{47+4*k}], v3 offset:{L_REC + k*K1_THREADS*16}")
        a(f"v_add_u32 v38, {3*K1_THREADS*16}, v3")
        a(f"v_cmp_gt_u32 vcc, {CH*16}, v38")
        for k in range(3):
            a(f"v_add_u32 v{39+k}, {k*K1_THREADS*16}, v3")
        for k in range(3):
            a(f"s_waitcnt lgkmcnt({3-k})")
            a(f"buffer_store_dwordx4 v[{44+4*k}:{47+4*k}], v{39+k}, s[36:39], s18 offen {stflag}")
        a("s_waitcnt lgkmcnt(0)")
        a("s_and_b64 exec, exec, vcc")
        tail = name + "_tail"
        a(f"s_cbranch_execz {tail}")
        a(f"buffer_store_dwordx4 v[56:59], v38, s[36:39], s18 offen {stflag}")
        a.label(tail)
        a("s_mov_b64 exec, s[50:51]")
    a("s_waitcnt lgkmcnt(0)")
    a(f"s_add_u32 s46, s17, {WS_LOC}")
    a(f"buffer_store_dword v7, v1, s[36:39], s46 offen {stflag}")
    a("s_lshl_b32 s46, s2, 13")
    a(f"s_add_u32 s46, s46, {WS_L32}")
    a("s_mov_b64 s[50:51], exec")
    a("v_cmp_gt_u32 vcc, 512, v0")
    a("s_and_b64 exec, exec, vcc")
    l32 = name + "_no32"
    a(f"s_cbranch_execz {l32}")
    a(f"buffer_store_dwordx4 v[64:67], v3, s[36:39], s46 offen {stflag}")
    a.label(l32)
    a("s_mov_b64 exec, s[50:51]")
    a("v_readfirstlane_b32 s47, v0")
    a("s_nop 3")
    a("s_cmp_ge_u32 s47, 64")
    skip = name + "_notab"
    a(f"s_cbranch_scc1 {skip}")
    a("s_lshl_b32 s46, s2, 10")
    a(f"s_add_u32 s46, s46, {WS_TAB}")
    a("v_lshlrev_b32 v6, 4, v6")
    a(f"buffer_store_dwordx4 v[60:63], v6, s[36:39], s46 offen {stflag}")
    a.label(skip)
    if pfxl and pfxl[1] == "late":
        prefetch_x_share(a, name, pfxl[0])
    if stamps:
        a("s_waitcnt vmcnt(0)")
        stamp(a, 68)
        a("s_waitcnt lgkmcnt(0)")
        a("v_readfirstlane_b32 s47, v0")
        a("s_nop 3")
        a("s_cmp_lg_u32 s47, 0")
        a(f"s_cbranch_scc1 {done}")
        a("s_mov_b64 exec, 1")
        for i in range(10):
            a(f"v_mov_b32 v{8+i}, s{60+i}")
        a("v_mov_b32 v6, 0")
        a("s_lshl_b32 s46, s2, 6")
        a(f"s_add_u32 s46, s46, {WS_STAMP}")
        a("buffer_store_dwordx4 v[8:11], v6, s[36:39], s46 offen")
        a("buffer_store_dwordx4 v[12:15], v6, s[36:39], s46 offen offset:16")
        a("buffer_store_dwordx2 v[16:17], v6, s[36:39], s46 offen offset:32")
    if dbg:
        a("s_waitcnt vmcnt(0)")
        stamp(a, 68)
        a("s_waitcnt lgkmcnt(0)")
        a("v_readfirstlane_b32 s47, v0")
        a("s_nop 3")
        a("s_cmp_lg_u32 s47, 0")
        a(f"s_cbranch_scc1 {done}")
        a("s_mov_b64 exec, 1")
        a("v_mov_b32 v8, s60")
        a("v_mov_b32 v9, s62")
        a("v_mov_b32 v10, s66")
        a("v_mov_b32 v11, s68")
        a("v_mov_b32 v6, 0")
        a("s_lshl_b32 s46, s2, 4")
        a(f"s_add_u32 s46, s46, {WS_STAMP}")
        a("buffer_store_dwordx4 v[8:11], v6, s[36:39], s46 offen")
    a.label(done)
    a("s_endpgm")
    kernel_desc(a, name, 80, sgpr=80)
    return (name, 80, 80, K1_THREADS)


if __name__ == "__main__":
    a = Asm()
    a('.amdgcn_target "amdgcn-amd-amdhsa--gfx950"')
    ks = [gen_k1(a, "part_kernel", stflag="sc1"), gen_k1(a, "parts_kernel", stamps=True, stflag="sc1"),
          gen_k1(a, "partl1_kernel", stamps=True, stflag="sc1", ldflag="nt"),
          gen_k1(a, "partl2_kernel", stamps=True, stflag="nt", ldflag="nt"),
          gen_k1(a, "partl3_kernel", stamps=True, stflag="sc1", ldflag="sc1"),
          gen_k1(a, "partl4_kernel", stamps=True, stflag="sc1", ldflag="sc0 sc1 nt")]
    metadata(a, ks, 96)
    open("k1.s", "w").write(a.text())
```

```python
from asmlib import *
from gen_k1 import (E, N, G1, CH, NBK, WS_REC, WS_LOC, WS_TAB, WS_L32, WS_END, WS_STAMP, srd, wave_scan)

K2_THREADS = 512
CAP = 2944
WS_SCR = 16 << 20
WS_SCR_END = WS_SCR + NBK * K2_THREADS * 96
L_CNT = 0
L_FLAG = 256
L_WCNT = 264
L_PN = 288
L_MASK = 320
L_ONES = L_MASK + 33 * 64
L_RAD = 2816
L_RAW = L_RAD + 3072
L_P = L_RAW + CAP * 16
P_PITCH = 2080
L_W = L_P
L_GATE = L_P + 40 * P_PITCH
G_PITCH = 272
L_LB = L_GATE
L_XROW = L_GATE
K2_LDS = L_GATE + 16384
assert L_ONES + 320 <= L_RAD and L_P % 16 == 0 and L_GATE % 16 == 0 and K2_LDS <= 163840

V_TID = 0
V_AADDR, V_YADDR, V_YMASK, V_LBA, V_SADDR, V_MBASE, V_TMP = 1, 2, 3, 4, 5, 6, 7
V_IDX = 8
V_A = 24
V_AN = 28
V_M = 32
V_T = 228
V_RAW = 36
V_FRAG = 68
V_ACC = 100
V_W = 132
V_WF = 164
V_AF = 212
V_END = 252
V_PL = 253
V_WA = 4
V_PT = 236
V_PF = 254
V_X = 228
V_REC = 36
V_LOC = 72
V_RANK = 81
V_SEG = 90
V_I = 91
V_ENT = 92
V_L32 = 108
V_BP = 100
V_WPK = 116
S_B, S_WV = 2, 3
S_X, S_WS, S_WR, S_W0, S_W1, S_OUT, S_XP = 16, 20, 24, 28, 32, 36, 40
S_SELLO, S_SELHI = 44, 45
S_VAL = 46
S_E, S_CUR, S_CUR0, S_LO, S_HI, S_PART, S_PNODE = 64, 65, 66, 67, 68, 69, 70
S_NG, S_G32, S_GEND, S_LG, S_SOFF, S_POFF, S_FRESH, S_PH, S_LEFT = 75, 76, 77, 78, 79, 80, 81, 82, 83
S_T = 84
S_MODE, S_RND, S_NEWW, S_BK = 92, 93, 94, 95
S_LBW = 71
S_FORCE = 74
S_PFB = 12
S_SWP = 62
S_AGC, S_WRAP = 72, 73
S_OUTB, S_NV, S_SCR, S_OG, S_TP, S_NL2E = 56, 57, 58, 59, 60, 61
S_LOB, S_HIB, S_NGB, S_CUR0B, S_PARTB, S_PNODEB, S_RUN, S_RA, S_RB, S_RHOB, S_G = 46, 47, 48, 49, 50, 51, 52, 53, 54, 55, 13
S_ST = 96

PATHS = [
    {(0, 0): (0, 0), (0, 1): (3, 0), (1, 0): (2, 0), (1, 1): (1, 0), (2, 0): (2, 0), (2, 1): (4, 1), (3, 0): (2, 0), (3, 1): (4, 0)},
    {(0, 0): (3, 0), (0, 1): (3, 0), (1, 0): (4, 0), (1, 1): (4, 1), (2, 0): (1, 0), (2, 1): (4, 0), (3, 0): (4, 1), (3, 1): (1, 0)},
]


def path_const(ph):
    k = 0
    for q in range(4):
        for t in range(2):
            p, s = PATHS[ph][(q, t)]
            k |= (p | (s << 3)) << (4 * (2 * q + t))
    return k


OG_SLICES = [[0, 5, 10, 15], [1, 4, 14, 11], [2, 8, 7, 13], [3, 12, 9, 6]]
OG_BLOCKS = [[0, 8192, 8192], [16384, 24576, 32768]]
SI_BLOCK = [0, 1, 2, 2]


def radial_addr(a, ph, vdst, vsgn, vt):
    a(f"v_bfe_u32 v{vt}, v{V_TID}, 3, 3")
    a(f"v_lshlrev_b32 v{vt}, 2, v{vt}")
    a(f"s_mov_b32 s{S_T}, {path_const(ph)}")
    a(f"v_lshrrev_b32 v{vt}, v{vt}, s{S_T}")
    a(f"v_bfe_u32 v{vsgn}, v{vt}, 3, 1")
    a(f"v_and_b32 v{vt}, 7, v{vt}")
    a(f"v_lshlrev_b32 v{vt}, 7, v{vt}")
    a(f"v_and_b32 v{vdst}, 7, v{V_TID}")
    a(f"v_lshl_add_u32 v{vdst}, v{vdst}, 4, v{vt}")
    a(f"s_mov_b32 s{S_T}, 0x80008000")
    a(f"v_mul_lo_u32 v{vsgn}, v{vsgn}, s{S_T}")


def radial_fetch(a, ph):
    vaddr, vsgn, vt, pk = V_FRAG + 16, V_FRAG + 17, V_FRAG + 18, V_FRAG
    radial_addr(a, ph, vaddr, vsgn, vt)
    for d in range(4):
        a(f"ds_read_b128 v[{pk+4*d}:{pk+4*d+3}], v{vaddr} offset:{L_RAD + d*640}")
    for d in range(4):
        a(f"s_waitcnt lgkmcnt({3-d})")
        for i in range(4):
            a(f"v_xor_b32 v{pk+4*d+i}, v{pk+4*d+i}, v{vsgn}")
        for f in range(8):
            src = pk + 4 * d + (f >> 1)
            if f & 1:
                a(f"v_and_b32 v{V_W+4*f+d}, 0xffff0000, v{src}")
            else:
                a(f"v_lshlrev_b32 v{V_W+4*f+d}, 16, v{src}")


ATR = False
PK = False
PF3 = None
ABL = set()
EOFF = [j * 16 if j < 4 else 256 + (j - 4) * 16 for j in range(8)]


def read_idx(a, loop=False):
    for j in range(0 if (loop and 'noidx' in ABL) else 8):
        a(f"ds_read_u16 v{V_IDX+2*j}, v{V_SADDR} offset:{EOFF[j]}")


def issue_x(a, flag="", raw=None):
    raw = V_RAW if raw is None else raw
    for j in range(8):
        a(f"buffer_load_dwordx4 v[{raw+4*j}:{raw+4*j+3}], v[{V_IDX+2*j}:{V_IDX+2*j+1}], s[{S_X}:{S_X+3}], s{S_SOFF} idxen offen {flag}")


def advance_load_stream(a):
    a(f"s_sub_u32 s{S_LG}, s{S_LG}, 1")
    a(f"s_cmp_eq_u32 s{S_LG}, 0")
    a(f"s_cselect_b32 s{S_T}, s{S_WRAP}, 0x200")
    a(f"s_cselect_b32 s{S_LG}, s{S_NGB}, s{S_LG}")
    a(f"s_cselect_b32 s{S_SOFF}, 0x100, s{S_SOFF}")
    a(f"v_add_u32 v{V_SADDR}, s{S_T}, v{V_SADDR}")


def range_nodes(a):
    a(f"s_mov_b32 s{S_RUN}, 0")
    a(f"s_mov_b32 s{S_CUR0}, 0")
    a(f"s_mov_b32 s{S_CUR0B}, 0")
    a(f"s_mov_b32 s{S_T+3}, -1")
    for rho in range(8):
        a(f"s_mul_i32 s{S_T}, s{S_G}, {rho+1}")
        a(f"s_lshr_b32 s{S_T}, s{S_T}, 3")
        a(f"s_lshl_b32 s{S_T}, s{S_T}, 5")
        a(f"v_cmp_ge_u32 vcc, s{S_T}, v{V_END}")
        a("s_nop 1")
        a(f"s_bcnt1_i32_b64 s{S_T+1}, vcc")
        if rho >= 1:
            a(f"s_cmp_eq_u32 s{S_T+1}, s{S_T+3}")
            a(f"s_cselect_b32 s{S_T+2}, {1 << rho}, 0")
            a(f"s_cmp_lt_u32 s{S_T+1}, 40")
            a(f"s_cselect_b32 s{S_T+2}, s{S_T+2}, 0")
            a(f"s_or_b32 s{S_RUN}, s{S_RUN}, s{S_T+2}")
        if rho < 7:
            a(f"s_cmp_eq_u32 s{S_WV}, {rho+1}")
            a(f"s_cselect_b32 s{S_CUR0}, s{S_T+1}, s{S_CUR0}")
            a(f"s_cmp_eq_u32 s{S_RHOB}, {rho+1}")
            a(f"s_cselect_b32 s{S_CUR0B}, s{S_T+1}, s{S_CUR0B}")
        a(f"s_mov_b32 s{S_T+3}, s{S_T+1}")
    for lo, c0 in ((S_LO, S_CUR0), (S_LOB, S_CUR0B)):
        a(f"s_cmp_eq_u32 s{lo}, 0")
        a(f"s_cselect_b32 s{c0}, 0, s{c0}")
    for rho, r in ((S_WV, S_RA), (S_RHOB, S_RB)):
        a(f"s_not_b32 s{S_T}, s{S_RUN}")
        a(f"s_sub_u32 s{S_T+1}, 31, s{rho}")
        a(f"s_lshl_b32 s{S_T}, s{S_T}, s{S_T+1}")
        a(f"s_flbit_i32_b32 s{r}, s{S_T}")


def a_reads(a):
    af, yf = V_AF, V_AF + 8
    if ATR:
        a(f"ds_read_b64_tr_b16 v[{af+4}:{af+5}], v{V_AADDR}")
        a(f"ds_read_b64_tr_b16 v[{af+6}:{af+7}], v{V_AADDR} offset:256")
    for j in range(0 if 'noa' in ABL else 8):
        if not ATR:
            a(f"ds_read_u16_d16_hi v{af+j}, v{V_AADDR} offset:{EOFF[j]}")
        a(f"ds_read_u16_d16_hi v{yf+j}, v{V_YADDR} offset:{EOFF[j]}")
    a(f"s_sub_u32 s{S_AGC}, s{S_AGC}, 1")
    a(f"s_cmp_eq_u32 s{S_AGC}, 0")
    a(f"s_cselect_b32 s{S_T}, s{S_WRAP}, 0x200")
    a(f"s_cselect_b32 s{S_AGC}, s{S_NGB}, s{S_AGC}")
    a(f"v_add_u32 v{V_AADDR}, s{S_T}, v{V_AADDR}")
    a(f"v_and_b32 v{V_TMP}, s{S_T}, v{V_YMASK}")
    a(f"v_add_u32 v{V_YADDR}, v{V_TMP}, v{V_YADDR}")


def mask_read(a):
    a(f"s_sub_u32 s{S_T}, s{S_E}, s{S_G32}")
    a(f"s_min_u32 s{S_T}, s{S_T}, 32")
    a(f"s_lshl_b32 s{S_T}, s{S_T}, 6")
    a(f"v_add_u32 v{V_TMP}, s{S_T}, v{V_MBASE}")
    a(f"ds_read_b128 v[{V_M}:{V_M+3}], v{V_TMP}")


def a_finish(a, wait=0):
    af, yf = V_AF, V_AF + 8
    a(f"s_waitcnt lgkmcnt({wait})")
    if 'noafin' in ABL:
        return
    if ATR:
        for i in range(4):
            a(f"v_lshlrev_b32 v{af+2*i}, 16, v{af+4+i}")
            a(f"v_and_b32 v{af+2*i+1}, 0xffff0000, v{af+4+i}")
    if PK:
        for i in range(4):
            a(f"v_pk_mul_f32 v[{af+2*i}:{af+2*i+1}], v[{af+2*i}:{af+2*i+1}], v[{yf+2*i}:{yf+2*i+1}]")
    else:
        for j in range(8):
            a(f"v_mul_f32 v{af+j}, v{af+j}, v{yf+j}")
    for i in range(4):
        a(f"v_cvt_pk_bf16_f32 v{V_A+i}, v{af+2*i}, v{af+2*i+1}")


def mfma_block(a, va, fresh):
    if 'nomfma' in ABL:
        return
    for f in range(8):
        ac = V_ACC + 4 * f
        c = "0" if fresh else f"v[{ac}:{ac+3}]"
        a(f"v_mfma_f32_16x16x32_bf16 v[{ac}:{ac+3}], v[{va}:{va+3}], v[{V_FRAG+4*f}:{V_FRAG+4*f+3}], {c}")


def contract(a, dst):
    if 'noflush' in ABL:
        return
    for f in range(8):
        ac, w = V_ACC + 4 * f, V_W + 4 * f
        a(f"v_mul_f32 v{dst+f}, v{ac}, v{w}")
        for d in range(1, 4):
            a(f"v_fmac_f32 v{dst+f}, v{ac+d}, v{w+d}")


STAMP_SETS = {
    True: {"tab": 1, "records": 2, "sorted": 3, "mainend": 4, "pdone": 5, "issued": 6, "done": 7},
    "epi": {"mainend": 1, "barA": 2, "pdone": 3, "gemm": 4, "gate": 5, "issued": 6, "done": 7},
    "mid": {"sorted": 1, "xissued": 2, "loopstart": 3, "firstdata": 4, "phaseB": 5, "mainend": 6, "done": 7},
    "clk": {"phaseB": 2, "mainend": 4, "done": 7},
    "pro": {"tab": 1, "ent": 2, "ldissued": 3, "ranked": 4, "bar1": 5, "records": 6, "sorted": 7},
}


def stamp_at(a, stamps, key):
    if stamps and key in STAMP_SETS[stamps]:
        stamp_regs(a, STAMP_SETS[stamps][key])
        if stamps == "clk" and key != "done":
            a(f"s_memtime s[{S_ST}:{S_ST+1}]")
            a("s_waitcnt lgkmcnt(0)")
            a(f"s_mov_b32 s{4+STAMP_SETS[stamps][key]+1}, s{S_ST}")


def stamp_regs(a, k):
    a(f"s_memrealtime s[{S_ST}:{S_ST+1}]")
    a("s_waitcnt lgkmcnt(0)")
    a(f"s_mov_b32 s{4+k}, s{S_ST}")


def prefetch_x(a, ph, v0, v1):
    a(f"s_lshr_b32 s{S_T}, s2, 3")
    a(f"s_mul_i32 s{S_T}, s{S_T}, {313*512}")
    a(f"s_add_u32 s{S_T}, s{S_T}, {ph*256}")
    a(f"v_lshrrev_b32 v{v0}, 1, v{V_TID}")
    a(f"v_lshlrev_b32 v{v0}, 9, v{v0}")
    a(f"v_and_b32 v{v1}, 1, v{V_TID}")
    a(f"v_lshl_add_u32 v{v0}, v{v1}, 7, v{v0}")
    a(f"v_add_u32 v{v0}, s{S_T}, v{v0}")
    a(f"v_add_u32 v{v1}, {256*512}, v{v0}")
    a(f"v_cmp_gt_u32 vcc, {626-512}, v{V_TID}")
    a(f"v_mov_b32 v{V_TMP}, 0x7fffff00")
    a(f"buffer_load_dword v{v0}, v{v0}, s[{S_XP}:{S_XP+3}], 0 offen")
    a(f"v_cndmask_b32 v{v1}, v{V_TMP}, v{v1}, vcc")
    a(f"buffer_load_dword v{v1}, v{v1}, s[{S_XP}:{S_XP+3}], 0 offen")


def perm_tile(a, f):
    if 'noperm' in ABL:
        return
    dd, hi = f >> 1, f & 1
    for i in range(4):
        a(f"v_perm_b32 v{V_FRAG+4*f+i}, v{V_RAW+(2*i+1)*4+dd}, v{V_RAW+(2*i)*4+dd}, s{S_SELHI if hi else S_SELLO}")


def mfma_tile(a, f, va, fresh):
    if 'nomfma' in ABL:
        return
    ac = V_ACC + 4 * f
    c = "0" if fresh else f"v[{ac}:{ac+3}]"
    a(f"v_mfma_f32_16x16x32_bf16 v[{ac}:{ac+3}], v[{va}:{va+3}], v[{V_FRAG+4*f}:{V_FRAG+4*f+3}], {c}")


def contract_tile(a, f):
    if 'noflush' in ABL:
        return
    ac, w = V_ACC + 4 * f, V_W + 4 * f
    if PK:
        t = V_AN + 2 * (f & 1)
        a(f"v_pk_mul_f32 v[{t}:{t+1}], v[{ac}:{ac+1}], v[{w}:{w+1}]")
        a(f"v_pk_fma_f32 v[{t}:{t+1}], v[{ac+2}:{ac+3}], v[{w+2}:{w+3}], v[{t}:{t+1}]")
        a(f"v_add_f32 v{V_T+f}, v{t}, v{t+1}")
        return
    a(f"v_mul_f32 v{V_T+f}, v{ac}, v{w}")
    for d in range(1, 4):
        a(f"v_fmac_f32 v{V_T+f}, v{ac+d}, v{w+d}")


def next_node(a):
    a(f"s_add_u32 s{S_CUR}, s{S_CUR}, 1")
    a(f"v_readlane_b32 s{S_E}, v{V_END}, s{S_CUR}")
    a(f"v_add_u32 v{V_TMP}, s{S_POFF}, v{V_PL}")
    a(f"s_add_u32 s{S_POFF}, s{S_POFF}, {P_PITCH}")


def store_row(a):
    for i in range(4):
        a(f"v_cvt_pk_bf16_f32 v{V_T+i}, v{V_T+2*i}, v{V_T+2*i+1}")
    a(f"ds_write_b128 v{V_TMP}, v[{V_T}:{V_T+3}]")


def zero_acc(a):
    for i in range(32):
        a(f"v_mov_b32 v{V_ACC+i}, 0")


def visit(a, name, issue, xflag, loop, endrange, prio=None):
    pb, after, pbmore, pbtail = (a.uid(name + x) for x in ("_pb", "_after", "_more", "_pbt"))

    def gather_part(va):
        a("s_waitcnt vmcnt(0)")
        if prio == "crit":
            a("s_setprio 1")
        perm_tile(a, 0)
        for f in range(1, 8):
            perm_tile(a, f)
            mfma_tile(a, f - 1, va, False)
        if issue and 'noload' not in ABL:
            for j in range(2):
                a(f"buffer_load_dwordx4 v[{V_RAW+4*j}:{V_RAW+4*j+3}], v[{V_IDX+2*j}:{V_IDX+2*j+1}], s[{S_X}:{S_X+3}], s{S_SOFF} idxen offen {xflag}")
        else:
            a("s_nop 1")
        mfma_tile(a, 7, va, False)
        if issue:
            if 'noload' not in ABL:
                for j in range(2, 8):
                    a(f"buffer_load_dwordx4 v[{V_RAW+4*j}:{V_RAW+4*j+3}], v[{V_IDX+2*j}:{V_IDX+2*j+1}], s[{S_X}:{S_X+3}], s{S_SOFF} idxen offen {xflag}")
            if prio == "crit":
                a("s_setprio 0")
            advance_load_stream(a)
            read_idx(a, True)
            a_reads(a)

    a(f"s_add_u32 s{S_GEND}, s{S_G32}, 32")
    a(f"s_cmp_le_u32 s{S_E}, s{S_GEND}")
    a(f"s_cbranch_scc1 {pb}")
    gather_part(V_A)
    a.label(after)
    a(f"s_mov_b32 s{S_G32}, s{S_GEND}")
    a(f"s_cmp_ge_u32 s{S_G32}, s{S_HI}")
    a(f"s_cbranch_scc1 {endrange}")
    if issue:
        a.label(name + "_resume")
        if PF3:
            a(f"s_cmp_eq_u32 s{S_LEFT}, s{S_PFB}")
            a(f"s_cbranch_scc1 {name}_pf3")
            a.label(name + "_pf3r")
        if isinstance(prio, tuple):
            a(f"s_cmp_eq_u32 s{S_LEFT}, s{S_SWP}")
            a(f"s_cbranch_scc1 {name}_swp")
            a.label(name + "_swpr")
        mask_read(a)
        a_finish(a, 1)
        a(f"s_sub_u32 s{S_LEFT}, s{S_LEFT}, 1")
        a(f"s_cmp_eq_u32 s{S_LEFT}, 0")
        a(f"s_cbranch_scc0 {loop}")
        a(f"s_branch {name}_final")
    else:
        a(f"s_branch {endrange}")
    if issue and isinstance(prio, tuple):
        a.label(name + "_swp")
        set_prio(a, name, False)
        a(f"s_branch {name}_swpr")
    if issue and PF3:
        a.label(name + "_pf3")
        a(f"s_lshr_b32 s{S_T}, s2, 3")
        a(f"s_mul_i32 s{S_T}, s{S_T}, {313*512}")
        a(f"s_mul_i32 s{S_T+1}, s{S_WV}, {39*512}")
        a(f"s_add_u32 s{S_T}, s{S_T}, s{S_T+1}")
        a(f"s_add_u32 s{S_T}, s{S_T}, 256")
        a(f"v_and_b32 v{V_TMP}, 63, v0")
        a(f"v_lshrrev_b32 v{V_PF+1}, 1, v{V_TMP}")
        a(f"v_lshlrev_b32 v{V_PF+1}, 9, v{V_PF+1}")
        a(f"v_and_b32 v{V_PF}, 1, v{V_TMP}")
        a(f"v_lshl_add_u32 v{V_PF+1}, v{V_PF}, 7, v{V_PF+1}")
        a(f"v_cmp_gt_u32 vcc, {PF3[0]}, v{V_TMP}")
        a("s_and_b64 exec, exec, vcc")
        a(f"buffer_load_dword v{V_PF}, v{V_PF+1}, s[{S_XP}:{S_XP+3}], s{S_T} offen")
        a("s_mov_b64 exec, -1")
        a(f"s_branch {name}_pf3r")
    a.label(pb)
    a("s_waitcnt lgkmcnt(0)")
    for i in range(4):
        a(f"v_and_b32 v{V_AN+i}, v{V_A+i}, v{V_M+i}")
    for i in range(4):
        a(f"v_xor_b32 v{V_A+i}, v{V_A+i}, v{V_AN+i}")
    next_node(a)
    a(f"s_mov_b32 s{S_T+3}, s{S_G32}")
    gather_part(V_AN)
    a(f"s_sub_u32 s{S_T}, s{S_POFF}, {P_PITCH}")
    a(f"v_add_u32 v{V_TMP}, s{S_T}, v{V_PL}")
    a(f"s_cmp_le_u32 s{S_E}, s{S_GEND}")
    a(f"s_cbranch_scc1 {pbmore}")
    a.label(pbtail)
    for f in range(8):
        contract_tile(a, f)
        mfma_tile(a, f, V_A, True)
    store_row(a)
    a(f"s_branch {after}")
    a.label(pbmore)
    a("s_nop 7")
    for f in range(8):
        contract_tile(a, f)
    store_row(a)
    a(f"s_sub_u32 s{S_T}, s{S_E}, s{S_G32}")
    a(f"s_lshl_b32 s{S_T}, s{S_T}, 6")
    a(f"v_add_u32 v{V_TMP}, s{S_T}, v{V_MBASE}")
    a("s_waitcnt lgkmcnt(0)")
    a(f"ds_read_b128 v[{V_M}:{V_M+3}], v{V_TMP}")
    next_node(a)
    a("s_waitcnt lgkmcnt(0)")
    for i in range(4):
        a(f"v_and_b32 v{V_AN+i}, v{V_A+i}, v{V_M+i}")
    for i in range(4):
        a(f"v_xor_b32 v{V_A+i}, v{V_A+i}, v{V_AN+i}")
    a("s_nop 1")
    for f in range(8):
        mfma_tile(a, f, V_AN, True)
    a(f"s_cmp_le_u32 s{S_E}, s{S_GEND}")
    a(f"s_cbranch_scc1 {pbmore}")
    a("s_nop 7")
    a(f"s_branch {pbtail}")


def set_prio(a, name, hi_young):
    l0, l1 = a.uid(name + '_p0'), a.uid(name + '_p1')
    a(f"s_cmp_ge_u32 s{S_WV}, 4")
    a(f"s_cbranch_scc{0 if hi_young else 1} {l0}")
    a("s_setprio 1")
    a(f"s_branch {l1}")
    a.label(l0)
    a("s_setprio 0")
    a.label(l1)


def main_loop(a, name, xflag, endmain, prio=None, stamps=None):
    loop, endrange = name + "_loop", name + "_endrange"
    a(f"s_mov_b32 s{S_G32}, s{S_LO}")
    a(f"s_mov_b32 s{S_LG}, s{S_NG}")
    a(f"s_mov_b32 s{S_AGC}, s{S_NG}")
    a(f"s_mov_b32 s{S_SOFF}, 0")
    a(f"s_mov_b32 s{S_PH}, 0")
    a(f"s_sub_u32 s{S_T}, s{S_LOB}, s{S_HI}")
    a(f"s_add_u32 s{S_T}, s{S_T}, 32")
    a(f"s_lshl_b32 s{S_WRAP}, s{S_T}, 4")
    a(f"s_add_u32 s{S_LEFT}, s{S_NG}, s{S_NGB}")
    a(f"s_sub_u32 s{S_LEFT}, s{S_LEFT}, 1")
    if PF3:
        a(f"s_add_u32 s{S_PFB}, s{S_NGB}, {PF3[1]}")
    read_idx(a)
    a("s_waitcnt lgkmcnt(0)")
    weight_frags(a, name)
    issue_x(a, xflag)
    stamp_at(a, stamps, "xissued")
    advance_load_stream(a)
    range_nodes(a)
    a(f"s_mov_b32 s{S_CUR}, s{S_CUR0}")
    a(f"v_readlane_b32 s{S_E}, v{V_END}, s{S_CUR}")
    a(f"s_mul_i32 s{S_POFF}, s{S_CUR}, {P_PITCH}")
    radial_fetch(a, 0)
    read_idx(a)
    a_reads(a)
    mask_read(a)
    zero_acc(a)
    a_finish(a, 1)
    weight_frags_wait(a, name)
    if prio in ("swap", "young") or isinstance(prio, tuple):
        set_prio(a, name, True)
    if isinstance(prio, tuple):
        a(f"s_mul_i32 s{S_SWP}, s{S_NGB}, {prio[0]}")
        a(f"s_lshr_b32 s{S_SWP}, s{S_SWP}, 3")
    stamp_at(a, stamps, "loopstart")
    if stamps == "mid":
        a("s_waitcnt vmcnt(0)")
        stamp_at(a, stamps, "firstdata")
    a.label(loop)
    visit(a, name + "_v", True, xflag, loop, endrange, prio)
    a.label(name + "_v_final")
    visit(a, name + "_f", False, xflag, loop, endrange, prio)
    a.label(endrange)
    nopart = a.uid(name + "_nopart")
    a(f"s_cmp_eq_u32 s{S_E}, 0x7fffffff")
    a(f"s_cbranch_scc1 {nopart}")
    a("s_nop 7")
    for f in range(8):
        contract_tile(a, f)
    pb_, pj_ = a.uid(name + "_ptb"), a.uid(name + "_ptj")
    a(f"s_cmp_lg_u32 s{S_PH}, 0")
    a(f"s_cbranch_scc1 {pb_}")
    for i in range(8):
        a(f"v_mov_b32 v{V_PT+i}, v{V_T+i}")
    a(f"s_mov_b32 s{S_PART}, 1")
    a(f"s_mul_i32 s{S_PNODE}, s{S_CUR}, {P_PITCH}")
    a(f"s_branch {pj_}")
    a.label(pb_)
    for i in range(8):
        a(f"v_mov_b32 v{V_PT+8+i}, v{V_T+i}")
    a(f"s_mov_b32 s{S_PARTB}, 1")
    a(f"s_mul_i32 s{S_PNODEB}, s{S_CUR}, {P_PITCH}")
    a.label(pj_)
    a.label(nopart)
    a(f"s_cmp_lg_u32 s{S_PH}, 0")
    a(f"s_cbranch_scc1 {endmain}")
    a(f"s_mov_b32 s{S_PH}, 1")
    a(f"s_mov_b32 s{S_G32}, s{S_LOB}")
    a(f"s_mov_b32 s{S_HI}, s{S_HIB}")
    a(f"s_mov_b32 s{S_CUR}, s{S_CUR0B}")
    a(f"v_readlane_b32 s{S_E}, v{V_END}, s{S_CUR}")
    a(f"s_mul_i32 s{S_POFF}, s{S_CUR}, {P_PITCH}")
    a(f"s_add_u32 s{S_POFF}, s{S_POFF}, 1024")
    if prio == "swap":
        set_prio(a, name, False)
    stamp_at(a, stamps, "phaseB")
    radial_fetch(a, 1)
    zero_acc(a)
    a(f"s_branch {name}_v_resume")


def weight_transfers(a, name):
    a("v_and_b32 v8, 63, v0")
    a("v_lshrrev_b32 v9, 3, v8")
    a("v_bfe_u32 v10, v8, 1, 2")
    a("v_bfe_u32 v11, v8, 4, 1")
    a("v_xor_b32 v10, v10, v11")
    a("v_lshlrev_b32 v9, 7, v9")
    a("v_lshl_add_u32 v9, v10, 5, v9")
    a("v_and_b32 v10, 1, v8")
    a("v_lshl_add_u32 v9, v10, 4, v9")
    a("v_xor_b32 v10, 64, v9")
    a(f"s_lshl_b32 s{S_T+3}, s{S_WV}, 11")
    a(f"s_add_u32 s{S_T+4}, s{S_T+3}, {L_W}")
    a(f"s_mov_b32 m0, s{S_T+4}")
    a(f"s_add_u32 s{S_T+5}, s{S_T+3}, 1024")
    a(f"buffer_load_dwordx4 v9, s[{S_W0}:{S_W0+3}], s{S_T+3} offen lds")
    a(f"s_add_u32 s{S_T+4}, s{S_T+4}, 1024")
    a(f"s_mov_b32 m0, s{S_T+4}")
    a("s_nop 0")
    a(f"buffer_load_dwordx4 v10, s[{S_W0}:{S_W0+3}], s{S_T+5} offen lds")
    a(f"s_mul_i32 s{S_T+3}, s{S_WV}, 3072")
    for t in range(3):
        a(f"s_add_u32 s{S_T+5}, s{S_WV}, {t}")
        a(f"s_and_b32 s{S_T+5}, s{S_T+5}, 1")
        a(f"s_lshl_b32 s{S_T+5}, s{S_T+5}, 6")
        a(f"v_xor_b32 v11, s{S_T+5}, v9")
        a(f"s_add_u32 s{S_T+5}, s{S_T+3}, {t*1024}")
        a(f"s_add_u32 s{S_T+4}, s{S_T+5}, {L_W + 16384}")
        a(f"s_mov_b32 m0, s{S_T+4}")
        a("s_nop 0")
        a(f"buffer_load_dwordx4 v11, s[{S_W1}:{S_W1+3}], s{S_T+5} offen lds")
    a(f"s_mul_hi_u32 s{S_T+3}, s{S_WV}, 0x55555556")
    a(f"s_mul_i32 s{S_T+3}, s{S_T+3}, 3")
    a(f"s_sub_u32 s{S_T+3}, s{S_WV}, s{S_T+3}")
    a(f"s_lshl_b32 s{S_T+3}, s{S_T+3}, 10")
    a(f"s_add_u32 s{S_T+4}, s{S_T+3}, {L_RAD}")
    a(f"s_mov_b32 m0, s{S_T+4}")
    a("v_lshlrev_b32 v11, 4, v8")
    a(f"buffer_load_dwordx4 v11, s[{S_WR}:{S_WR+3}], s{S_T+3} offen lds")


def weight_frag_addr(a):
    t = V_X
    a(f"v_bfe_u32 v{t}, v0, 4, 2")
    a(f"v_bfe_u32 v{t+1}, v0, 2, 2")
    a(f"v_and_b32 v{t+2}, 3, v0")
    a(f"v_lshrrev_b32 v{t+4}, 1, v{t+1}")
    a(f"v_and_b32 v{t+5}, 1, v{t}")
    a(f"v_lshl_add_u32 v{t+4}, v{t+5}, 1, v{t+4}")
    a(f"s_and_b32 s{S_T}, s{S_WV}, 1")
    a(f"s_lshl_b32 s{S_T}, s{S_T}, 1")
    a(f"v_lshrrev_b32 v{t+5}, 1, v{t+2}")
    a(f"v_add_u32 v{t+5}, s{S_T}, v{t+5}")
    a(f"v_xor_b32 v{t+4}, v{t+5}, v{t+4}")
    a(f"v_lshlrev_b32 v{t+3}, 3, v{t}")
    a(f"v_add_u32 v{t+3}, v{t+3}, v{t+1}")
    a(f"v_lshlrev_b32 v{t+3}, 7, v{t+3}")
    a(f"v_lshl_add_u32 v{t+3}, v{t+4}, 5, v{t+3}")
    a(f"v_and_b32 v{t+5}, 1, v{t+2}")
    a(f"v_lshl_add_u32 v{t+3}, v{t+5}, 4, v{t+3}")
    a(f"v_add_u32 v{V_WA}, {L_W}, v{t+3}")


def weight_frags(a, name):
    nf2 = name + "_nf2"
    a(f"s_cmp_lg_u32 s{S_MODE}, 0")
    a(f"s_cbranch_scc1 {nf2}")
    a(f"s_cmp_lt_u32 s{S_WV}, 2")
    for bi in range(3):
        a(f"s_mov_b32 s{S_T+1}, {OG_BLOCKS[1][bi]}")
        a(f"s_cselect_b32 s{S_T+1}, {OG_BLOCKS[0][bi]}, s{S_T+1}")
        a(f"v_add_u32 v{V_TMP}, s{S_T+1}, v{V_WA}")
        for ks in range(2):
            for hf in range(2):
                r = V_WF + 16 * bi + 8 * ks + 4 * hf
                for rd in range(2):
                    a(f"ds_read_b64_tr_b16 v[{r+2*rd}:{r+2*rd+1}], v{V_TMP} offset:{rd*512 + ks*4096 + hf*8}")
    a(f"v_mov_b32 v{V_TMP}, {L_WCNT}")
    a(f"v_mov_b32 v{V_WA}, 1")
    a("s_mov_b64 exec, 1")
    a(f"ds_add_u32 v{V_TMP}, v{V_WA}")
    a("s_mov_b64 exec, -1")
    a.label(nf2)


def weight_frags_wait(a, name):
    done_, spin = name + "_wok", name + "_wspin"
    a(f"s_cmp_lg_u32 s{S_MODE}, 0")
    a(f"s_cbranch_scc1 {done_}")
    a(f"v_mov_b32 v{V_TMP}, {L_WCNT}")
    a.label(spin)
    a(f"ds_read_b32 v{V_WA}, v{V_TMP}")
    a("s_waitcnt lgkmcnt(0)")
    a(f"v_readfirstlane_b32 s{S_T}, v{V_WA}")
    a("s_nop 3")
    a(f"s_cmp_lt_u32 s{S_T}, 8")
    a(f"s_cbranch_scc1 {spin}")
    a.label(done_)


def gen_k2(a, name, stamps=False, dump=None, xflag="", pfa=False, pfb=False, stflag="", xcdmap=True, pfr=0, abl=(), prio=None, rflag='', pf2=0, pf3=None, pk=False, atr=False):
    global PF3, PK, ATR
    PF3 = pf3
    PK = pk
    ATR = atr
    global ABL
    ABL = set(abl)
    kernel_header(a, name)
    done = name + "_done"
    a(f"s_cmp_ge_u32 s2, {NBK}")
    a(f"s_cbranch_scc1 {done}")
    if stamps:
        a("s_memrealtime s[98:99]")
    a("s_load_dwordx2 s[4:5], s[0:1], 0")
    a("s_load_dwordx4 s[8:11], s[0:1], 40")
    a("s_load_dwordx2 s[12:13], s[0:1], 56")
    a("s_load_dwordx2 s[14:15], s[0:1], 72")
    a("s_load_dwordx2 s[6:7], s[0:1], 88")
    a(f"v_lshrrev_b32 v1, 6, v0")
    if xcdmap:
        a(f"s_and_b32 s{S_BK}, s2, 7")
        a(f"s_lshl_b32 s{S_BK}, s{S_BK}, 5")
        a(f"s_lshr_b32 s{S_T}, s2, 3")
        a(f"s_or_b32 s{S_BK}, s{S_BK}, s{S_T}")
    else:
        a(f"s_mov_b32 s{S_BK}, s2")
    a(f"v_readfirstlane_b32 s{S_WV}, v1")
    a("s_waitcnt lgkmcnt(0)")
    srd(a, S_WS, 6, WS_SCR_END)
    a(f"s_lshl_b32 s{S_T}, s{S_WV}, 15")
    a(f"s_lshl_b32 s{S_T+1}, s{S_BK}, 2")
    a(f"s_add_u32 s{S_T}, s{S_T}, s{S_T+1}")
    a(f"s_add_u32 s{S_T}, s{S_T}, {WS_TAB}")
    a("v_and_b32 v2, 31, v0")
    a("v_lshlrev_b32 v2, 10, v2")
    a(f"buffer_load_dword v{V_SEG}, v2, s[{S_WS}:{S_WS+3}], s{S_T} offen")
    a(f"s_lshl_b32 s{S_T}, s{S_WV}, 18")
    a(f"s_lshl_b32 s{S_T+1}, s{S_BK}, 5")
    a(f"s_add_u32 s{S_T}, s{S_T}, s{S_T+1}")
    a(f"s_add_u32 s{S_T}, s{S_T}, {WS_L32}")
    a("v_lshlrev_b32 v2, 3, v2")
    a(f"buffer_load_dwordx4 v[{V_L32}:{V_L32+3}], v2, s[{S_WS}:{S_WS+3}], s{S_T} offen")
    a(f"buffer_load_dwordx4 v[{V_L32+4}:{V_L32+7}], v2, s[{S_WS}:{S_WS+3}], s{S_T} offen offset:16")
    a("v_lshrrev_b32 v1, 4, v0")
    a("v_bfe_u32 v2, v0, 2, 2")
    a("v_lshlrev_b32 v2, 2, v2")
    a("v_and_b32 v3, 1, v0")
    a("v_lshl_add_u32 v2, v3, 1, v2")
    a("v_bfe_u32 v3, v0, 1, 1")
    a("v_lshl_add_u32 v2, v3, 4, v2")
    a("v_mov_b32 v4, 0")
    a("v_mov_b32 v5, 0xffff")
    a("v_cmp_lt_u32 vcc, v2, v1")
    a("s_nop 1")
    a("v_cndmask_b32 v6, v4, v5, vcc")
    a("v_add_u32 v2, 1, v2")
    a("v_mov_b32 v5, 0xffff0000")
    a("v_cmp_lt_u32 vcc, v2, v1")
    a("s_nop 1")
    a("v_cndmask_b32 v7, v4, v5, vcc")
    a("v_or_b32 v6, v6, v7")
    a("v_lshlrev_b32 v8, 2, v0")
    a(f"v_add_u32 v9, {L_MASK}, v8")
    a("ds_write_b32 v9, v6")
    a("v_mov_b32 v5, -1")
    a("v_mov_b32 v6, 0x3f803f80")
    a("v_cmp_gt_u32 vcc, 80, v0")
    a("s_and_b64 exec, exec, vcc")
    a(f"ds_write_b32 v8, v6 offset:{L_ONES}")
    a(f"ds_write_b32 v8, v4 offset:{L_CNT}")
    a("v_cmp_gt_u32 vcc, 16, v0")
    a("s_and_b64 exec, exec, vcc")
    a(f"ds_write_b32 v9, v5 offset:2048")
    a("s_mov_b64 exec, -1")
    if pfr:
        a(f"s_lshr_b32 s{S_T}, s2, 3")
        a(f"s_lshl_b32 s{S_T}, s{S_T}, 3")
        a(f"s_add_u32 s{S_T}, s{S_T}, s{S_WV}")
        a(f"s_mul_i32 s{S_T}, s{S_T}, {CH*16}")
        a(f"s_and_b32 s{S_T+1}, s2, 7")
        a(f"s_mul_i32 s{S_T+1}, s{S_T+1}, 5000")
        a(f"s_add_u32 s{S_T}, s{S_T}, s{S_T+1}")
        a(f"s_max_u32 s{S_T}, s{S_T}, {pfr}")
        a(f"s_sub_u32 s{S_T}, s{S_T}, {pfr}")
        a("v_and_b32 v2, 63, v0")
        a("v_lshlrev_b32 v2, 7, v2")
        a(f"v_mov_b32 v3, 0x7fffff00")
        a(f"v_cmp_gt_u32 vcc, {5000 + 2*pfr + 128}, v2")
        a("s_nop 1")
        a("v_cndmask_b32 v2, v3, v2, vcc")
        a(f"buffer_load_dword v{V_X+10}, v2, s[{S_WS}:{S_WS+3}], s{S_T} offen")
    if 'l1' in ABL:
        srd(a, S_X, 4, N * 512)
    else:
        srd(a, S_X, 4, N, stride=512)
    srd(a, S_XP, 4, N * 512)
    srd(a, S_WR, 8, 2560)
    srd(a, S_W0, 10, 16384)
    srd(a, S_W1, 12, 24576)
    srd(a, S_OUT, 14, N * 512)
    if stamps:
        a(f"s_lshl_b32 s{S_ST+4}, s2, 3")
        a(f"s_add_u32 s{S_ST+4}, s{S_ST+4}, s{S_WV}")
        a(f"s_lshl_b32 s{S_ST+4}, s{S_ST+4}, 6")
        a(f"s_add_u32 s{S_ST+4}, s{S_ST+4}, {WS_STAMP}")
    a(f"s_mov_b32 s{S_SELLO}, 0x05040100")
    a(f"s_mov_b32 s{S_SELHI}, 0x07060302")
    a(f"v_and_b32 v{V_I}, 15, v0")
    a("v_bfe_u32 v1, v0, 4, 2")
    a("v_lshlrev_b32 v5, 8, v1")
    a("v_lshlrev_b32 v1, 5, v1")
    a(f"s_lshl_b32 s{S_T}, s{S_WV}, 10")
    a(f"s_add_u32 s{S_LBW}, s{S_T}, {L_LB}")
    a(f"v_add3_u32 v{V_LBA}, v5, v{V_I}, s{S_LBW}")
    a("v_and_b32 v6, 31, v0")
    a("v_lshlrev_b32 v6, 5, v6")
    a(f"v_add_u32 v6, s{S_LBW}, v6")
    a("s_waitcnt lgkmcnt(0)")
    a("s_barrier")
    a(f"s_mov_b32 s{S_MODE}, 0")
    a("s_waitcnt vmcnt(0)")
    stamp_at(a, stamps, 'tab')
    a(f"ds_write_b128 v6, v[{V_L32}:{V_L32+3}]")
    a(f"ds_write_b128 v6, v[{V_L32+4}:{V_L32+7}] offset:16")
    for it in range(8):
        a(f"v_add_u32 v{V_BP+it}, {4*it}, v1")
        a(f"ds_bpermute_b32 v{V_ENT+it}, v{V_BP+it}, v{V_SEG}")
    a("s_waitcnt lgkmcnt(0)")
    stamp_at(a, stamps, "ent")
    rnd = name + "_round"
    a.label(rnd)
    for it in range(8):
        e = V_ENT + it
        a(f"v_lshrrev_b32 v{V_X}, 20, v{e}")
        a(f"v_and_b32 v{e}, 0xfffff, v{e}")
        a(f"v_cmp_lt_u32 s[{S_VAL+2*it}:{S_VAL+2*it+1}], v{V_I}, v{V_X}")
        a(f"v_add_u32 v{e}, v{e}, v{V_I}")
        a(f"v_lshlrev_b32 v{V_RANK+it}, 4, v{e}")
    for it in range(8):
        a(f"s_mov_b64 exec, s[{S_VAL+2*it}:{S_VAL+2*it+1}]")
        a(f"buffer_load_dwordx4 v[{V_REC+4*it}:{V_REC+4*it+3}], v{V_RANK+it}, s[{S_WS}:{S_WS+3}], 0 offen {rflag}")
    a("s_mov_b64 exec, -1")
    noov = name + "_noov"
    a(f"s_mov_b32 s{S_T+2}, 0")
    a(f"s_mov_b32 s{S_FORCE}, 0")
    a(f"v_mov_b32 v{V_X+1}, 0")
    a(f"v_mov_b32 v{V_X+4}, s{S_LBW}")
    a(f"v_and_b32 v{V_X+2}, 63, v0")
    a(f"s_cmp_lg_u32 s{S_MODE}, 0")
    a(f"s_cbranch_scc1 {noov}")
    a(f"s_mov_b32 s{S_T+3}, {17 << 20}")
    a(f"v_cmp_le_u32 vcc, s{S_T+3}, v{V_SEG}")
    a(f"s_mov_b32 s{S_T+7}, {33 << 20}")
    a(f"s_mov_b32 s{S_T+4}, vcc_lo")
    a(f"v_cmp_le_u32 vcc, s{S_T+7}, v{V_SEG}")
    a("s_nop 1")
    a(f"s_cmp_eq_u32 vcc_lo, 0")
    a(f"s_cselect_b32 s{S_FORCE}, 0, 1")
    a(f"s_cselect_b32 s{S_T+4}, s{S_T+4}, 0")
    ovl = name + "_ovl"
    a.label(ovl)
    a(f"s_cmp_eq_u32 s{S_T+4}, 0")
    a(f"s_cbranch_scc1 {noov}")
    a(f"s_ff1_i32_b32 s{S_T+3}, s{S_T+4}")
    a(f"s_bitset0_b32 s{S_T+4}, s{S_T+3}")
    a(f"v_readlane_b32 s{S_T+5}, v{V_SEG}, s{S_T+3}")
    a(f"s_lshl_b32 s{S_T+3}, s{S_T+3}, 5")
    a(f"s_add_u32 s{S_T+3}, s{S_T+3}, s{S_LBW}")
    a(f"s_add_u32 s{S_T+3}, s{S_T+3}, 16")
    a(f"s_sub_u32 s{S_T+3}, s{S_T+3}, s{S_T+2}")
    a(f"s_lshr_b32 s{S_T+6}, s{S_T+5}, 20")
    a(f"s_sub_u32 s{S_T+6}, s{S_T+6}, 16")
    a(f"s_and_b32 s{S_T+5}, s{S_T+5}, 0xfffff")
    a(f"s_add_u32 s{S_T+5}, s{S_T+5}, 16")
    a(f"s_sub_u32 s{S_T+5}, s{S_T+5}, s{S_T+2}")
    a(f"v_subrev_u32 v{V_X+3}, s{S_T+2}, v{V_X+2}")
    a(f"v_cmp_gt_u32 vcc, s{S_T+6}, v{V_X+3}")
    a(f"v_add_u32 v{V_X+3}, s{S_T+5}, v{V_X+2}")
    a(f"v_add_u32 v{V_X+5}, s{S_T+3}, v{V_X+2}")
    a(f"s_add_u32 s{S_T+2}, s{S_T+2}, s{S_T+6}")
    a(f"v_cndmask_b32 v{V_X+1}, v{V_X+1}, v{V_X+3}, vcc")
    a(f"v_cndmask_b32 v{V_X+4}, v{V_X+4}, v{V_X+5}, vcc")
    a(f"s_branch {ovl}")
    a.label(noov)
    a(f"s_min_u32 s{S_T+3}, s{S_T+2}, 64")
    a(f"v_cmp_gt_u32 s[{S_VAL+16}:{S_VAL+17}], s{S_T+3}, v{V_X+2}")
    a(f"v_lshlrev_b32 v{V_RANK+8}, 4, v{V_X+1}")
    a("s_nop 3")
    a(f"s_mov_b64 exec, s[{S_VAL+16}:{S_VAL+17}]")
    a(f"buffer_load_dwordx4 v[{V_REC+32}:{V_REC+35}], v{V_RANK+8}, s[{S_WS}:{S_WS+3}], 0 offen {rflag}")
    a("s_mov_b64 exec, -1")
    stamp_at(a, stamps, "ldissued")
    lslow, ljoin = name + "_lslow", name + "_ljoin"
    a(f"s_cmp_lg_u32 s{S_MODE}, 0")
    a(f"s_cbranch_scc1 {lslow}")
    for it in range(8):
        a(f"ds_read_u8 v{V_LOC+it}, v{V_LBA} offset:{32*it}")
    a(f"ds_read_u8 v{V_LOC+8}, v{V_X+4}")
    a(f"s_cmp_gt_u32 s{S_T+2}, 64")
    a(f"s_cselect_b32 s{S_FORCE}, 1, s{S_FORCE}")
    a(f"s_cmp_eq_u32 s{S_FORCE}, 0")
    nofl = name + "_nofl"
    a(f"s_cbranch_scc1 {nofl}")
    a(f"v_mov_b32 v{V_X}, {L_FLAG}")
    a(f"v_mov_b32 v{V_X+1}, 1")
    a(f"ds_write_b32 v{V_X}, v{V_X+1}")
    a.label(nofl)
    a("s_waitcnt lgkmcnt(0)")
    a(f"s_branch {ljoin}")
    a.label(lslow)
    a(f"s_mov_b32 s{S_T+3}, {WS_LOC}")
    for it in range(8):
        a(f"s_mov_b64 exec, s[{S_VAL+2*it}:{S_VAL+2*it+1}]")
        a(f"buffer_load_ubyte v{V_LOC+it}, v{V_ENT+it}, s[{S_WS}:{S_WS+3}], s{S_T+3} offen")
    a("s_mov_b64 exec, -1")
    a("s_waitcnt vmcnt(0)")
    a.label(ljoin)
    a(f"v_mov_b32 v{V_X}, 1")
    for it in range(9):
        a(f"v_lshlrev_b32 v{V_LOC+it}, 2, v{V_LOC+it}")
    for it in range(9):
        a(f"s_mov_b64 exec, s[{S_VAL+2*it}:{S_VAL+2*it+1}]")
        a(f"ds_add_rtn_u32 v{V_RANK+it}, v{V_LOC+it}, v{V_X} offset:{L_CNT}")
    a("s_mov_b64 exec, -1")
    a("s_waitcnt lgkmcnt(0)")
    stamp_at(a, stamps, "ranked")
    a("s_barrier")
    stamp_at(a, stamps, "bar1")
    a("v_and_b32 v1, 63, v0")
    a("v_lshlrev_b32 v2, 2, v1")
    a(f"ds_read_b32 v3, v2 offset:{L_CNT}")
    a(f"v_mov_b32 v4, {L_FLAG}")
    a("ds_read_b32 v4, v4")
    a("s_waitcnt lgkmcnt(0)")
    a("v_mov_b32 v5, v3")
    wave_scan(a, 5)
    a("v_sub_u32 v7, v5, v3")
    a(f"v_readlane_b32 s{S_T+2}, v5, 63")
    a(f"v_readfirstlane_b32 s{S_T+3}, v4")
    a("v_cmp_gt_u32 vcc, 40, v1")
    a(f"v_mov_b32 v{V_END}, 0x7fffffff")
    a("s_nop 0")
    a(f"v_cndmask_b32 v{V_END}, v{V_END}, v5, vcc")
    a(f"s_add_u32 s{S_T+4}, s{S_T+2}, 31")
    a(f"s_lshr_b32 s{S_T+4}, s{S_T+4}, 5")
    a(f"s_max_u32 s{S_T+4}, s{S_T+4}, 1")
    slow = name + "_slow"
    fits = name + "_fits"
    a(f"s_cmp_lg_u32 s{S_MODE}, 0")
    a(f"s_cbranch_scc1 {fits}")
    a(f"s_cmp_gt_u32 s{S_T+4}, {CAP // 32}")
    a(f"s_cbranch_scc1 {slow}")
    a(f"s_cmp_lg_u32 s{S_T+3}, 0")
    a(f"s_cbranch_scc1 {slow}")
    a.label(fits)
    for it in range(9):
        a(f"ds_bpermute_b32 v{V_BP+it}, v{V_LOC+it}, v7")
    a(f"s_mov_b32 s{S_G}, s{S_T+4}")
    for it in range(9):
        a(f"s_waitcnt lgkmcnt({8-it})")
        a(f"v_add_u32 v{V_RANK+it}, v{V_RANK+it}, v{V_BP+it}")
        a(f"v_lshlrev_b32 v{V_RANK+it}, 4, v{V_RANK+it}")
    nowt = name + "_nowt"
    a(f"s_cmp_lg_u32 s{S_MODE}, 0")
    a(f"s_cbranch_scc1 {nowt}")
    weight_transfers(a, name)
    if pfa:
        prefetch_x(a, 0, V_PF, V_PF + 1)
    a.label(nowt)
    nlater = 6 + (2 if pfa else 0)
    for it in range(9):
        a(f"s_waitcnt vmcnt({8-it+nlater})")
        a(f"s_mov_b64 exec, s[{S_VAL+2*it}:{S_VAL+2*it+1}]")
        a(f"ds_write_b128 v{V_RANK+it}, v[{V_REC+4*it}:{V_REC+4*it+3}] offset:{L_RAW}")
    a("s_mov_b64 exec, -1")
    if pf2:
        wl = name + "_pf2"
        a(f"s_cmp_lg_u32 s{S_MODE}, 0")
        a(f"s_cbranch_scc1 {wl}")
        a(f"s_lshr_b32 s{S_T}, s2, 3")
        a(f"s_mul_i32 s{S_T}, s{S_T}, {313*512}")
        a(f"s_mul_i32 s{S_T+1}, s{S_WV}, {39*512}")
        a(f"s_add_u32 s{S_T}, s{S_T}, s{S_T+1}")
        a("v_and_b32 v8, 63, v0")
        a("v_lshrrev_b32 v9, 1, v8")
        a("v_lshlrev_b32 v9, 9, v9")
        a("v_and_b32 v10, 1, v8")
        a("v_lshl_add_u32 v9, v10, 7, v9")
        a(f"v_cmp_gt_u32 vcc, {pf2}, v8")
        a("s_and_b64 exec, exec, vcc")
        a(f"buffer_load_dword v{V_PF}, v9, s[{S_XP}:{S_XP+3}], s{S_T} offen")
        a("s_mov_b64 exec, -1")
        a.label(wl)
    stamp_at(a, stamps, 'records')
    a(f"s_sub_u32 s{S_RHOB}, 7, s{S_WV}")
    a(f"s_cmp_ge_u32 s{S_G}, 8")
    a(f"s_cselect_b32 s{S_RHOB}, s{S_RHOB}, s{S_WV}")
    for rho, lo, hi, ng in ((S_WV, S_LO, S_HI, S_NG), (S_RHOB, S_LOB, S_HIB, S_NGB)):
        a(f"s_mul_i32 s{lo}, s{rho}, s{S_G}")
        a(f"s_add_u32 s{hi}, s{lo}, s{S_G}")
        a(f"s_lshr_b32 s{lo}, s{lo}, 3")
        a(f"s_lshr_b32 s{hi}, s{hi}, 3")
        a(f"s_sub_u32 s{ng}, s{hi}, s{lo}")
        a(f"s_lshl_b32 s{lo}, s{lo}, 5")
        a(f"s_lshl_b32 s{hi}, s{hi}, 5")
    a(f"s_lshl_b32 s{S_T}, s{S_G}, 5")
    a(f"s_sub_u32 s{S_T}, s{S_T}, s{S_T+2}")
    a(f"v_add_u32 v2, s{S_T+2}, v1")
    a("v_lshlrev_b32 v2, 4, v2")
    a(f"v_mov_b32 v{V_X}, 0")
    a(f"v_mov_b32 v{V_X+1}, 0")
    a(f"v_mov_b32 v{V_X+2}, 0")
    a(f"v_mov_b32 v{V_X+3}, 0xffff0000")
    a(f"v_cmp_gt_u32 vcc, s{S_T}, v1")
    a("s_and_b64 exec, exec, vcc")
    a(f"ds_write_b128 v2, v[{V_X}:{V_X+3}] offset:{L_RAW}")
    a("s_mov_b64 exec, -1")
    a("v_bfe_u32 v8, v0, 4, 2")
    a(f"v_lshlrev_b32 v9, 6, v8")
    a(f"s_lshl_b32 s{S_T}, s{S_LO}, 4")
    a(f"s_add_u32 s{S_T}, s{S_T}, {L_RAW}")
    a(f"v_add_u32 v9, s{S_T}, v9")
    a(f"v_add_u32 v{V_SADDR}, 14, v9")
    if ATR:
        a("v_bfe_u32 v10, v0, 2, 2")
        a(f"v_lshl_add_u32 v{V_AADDR}, v10, 4, v9")
    else:
        a("v_and_b32 v10, 3, v0")
        a(f"v_lshl_add_u32 v{V_AADDR}, v10, 1, v9")
    a("v_bfe_u32 v10, v0, 2, 2")
    a("v_lshl_add_u32 v11, v10, 1, v9")
    a(f"v_add_u32 v11, 6, v11")
    a("v_cmp_eq_u32 vcc, 0, v10")
    a(f"v_mov_b32 v12, {L_ONES}")
    a(f"v_mov_b32 v13, -1")
    a(f"v_mov_b32 v14, 0")
    a(f"v_cndmask_b32 v{V_YADDR}, v11, v12, vcc")
    a(f"v_cndmask_b32 v{V_YMASK}, v13, v14, vcc")
    a(f"v_lshlrev_b32 v{V_MBASE}, 4, v8")
    a(f"v_add_u32 v{V_MBASE}, {L_MASK}, v{V_MBASE}")
    a("v_and_b32 v10, 15, v0")
    a("v_lshlrev_b32 v11, 7, v8")
    a("v_lshrrev_b32 v12, 3, v10")
    a("v_lshl_add_u32 v11, v12, 9, v11")
    a("v_and_b32 v12, 7, v10")
    a("v_lshl_add_u32 v11, v12, 4, v11")
    a(f"v_add_u32 v{V_PL}, {L_P}, v11")
    a("v_lshlrev_b32 v10, 4, v10")
    for j in range(8):
        a(f"v_mov_b32 v{V_IDX+2*j+1}, v10")
    a(f"s_mov_b32 s{S_PART}, 0")
    a(f"s_mov_b32 s{S_PARTB}, 0")
    weight_frag_addr(a)
    a(f"s_waitcnt vmcnt({2 if pfa else 1 if pf2 else 0}) lgkmcnt(0)")
    a("s_barrier")
    stamp_at(a, stamps, 'sorted')
    endmain = name + "_endmain"
    hasg = name + "_hasg"
    a(f"s_cmp_lg_u32 s{S_NG}, 0")
    a(f"s_cbranch_scc1 {hasg}")
    weight_frags(a, name + "_e")
    range_nodes(a)
    a(f"s_branch {endmain}")
    a.label(hasg)
    main_loop(a, name, xflag, endmain, prio, stamps)
    a.label(endmain)
    if prio:
        a("s_setprio 0")
    stamp_at(a, stamps, 'mainend')
    a(f"v_add_u32 v14, s{S_PNODE}, v{V_PL}")
    a(f"v_add_u32 v15, s{S_PNODEB}, v{V_PL}")
    a("v_bfe_u32 v1, v0, 4, 2")
    a("v_and_b32 v2, 15, v0")
    a(f"s_lshr_b32 s{S_OG}, s{S_WV}, 1")
    a(f"s_and_b32 s{S_TP}, s{S_WV}, 1")
    a(f"s_movk_i32 s{S_T}, {P_PITCH}")
    a(f"v_mul_u32_u24 v12, s{S_T}, v2")
    a("v_lshl_add_u32 v12, v1, 4, v12")
    a(f"v_add_u32 v12, {L_P}, v12")
    allsl = 0
    for og in range(4):
        for si in range(4):
            allsl |= OG_SLICES[og][si] << (16 * og + 4 * si)
    a(f"s_mov_b32 s88, {allsl & 0xffffffff}")
    a(f"s_mov_b32 s89, {allsl >> 32}")
    a(f"s_lshl_b32 s90, s{S_OG}, 4")
    a(f"s_lshr_b64 s[88:89], s[88:89], s90")
    for si in range(4):
        a(f"s_bfe_u32 s90, s88, {(4*si) | (4 << 16)}")
        a(f"s_lshl_b32 s90, s90, 7")
        a(f"v_add_u32 v{8+si}, s90, v12")
        a(f"v_add_u32 v{16+si}, {2*16*P_PITCH}, v{8+si}")
    a(f"s_mul_i32 s{S_SCR}, s{S_BK}, {K2_THREADS*96}")
    a(f"s_add_u32 s{S_SCR}, s{S_SCR}, {WS_SCR}")
    a("v_mul_u32_u24 v13, 96, v0")
    a(f"s_movk_i32 s{S_T}, {G_PITCH}")
    a(f"v_mul_u32_u24 v20, s{S_T}, v2")
    a("v_lshl_add_u32 v20, v1, 5, v20")
    a(f"s_lshl_b32 s{S_T}, s{S_TP}, 7")
    a(f"s_add_u32 s{S_T}, s{S_T}, {L_GATE}")
    a(f"v_add_u32 v20, s{S_T}, v20")
    a(f"s_mul_i32 s88, s{S_BK}, 625")
    a("s_add_u32 s89, s88, 15")
    a("s_lshr_b32 s89, s89, 4")
    a("s_add_u32 s88, s88, 640")
    a("s_lshr_b32 s88, s88, 4")
    a("s_sub_u32 s88, s88, s89")
    a(f"s_sub_u32 s{S_NV}, s88, 32")
    a("s_lshl_b32 s89, s89, 9")
    a(f"s_lshl_b32 s90, s{S_OG}, 7")
    a("s_add_u32 s89, s89, s90")
    a(f"s_lshl_b32 s90, s{S_TP}, 6")
    a(f"s_add_u32 s{S_OUTB}, s89, s90")
    a("v_lshlrev_b32 v21, 9, v2")
    a("v_lshl_add_u32 v21, v1, 4, v21")
    a(f"v_add_u32 v22, {16*512}, v21")
    a(f"v_add_u32 v23, {32*512}, v21")
    a(f"s_mov_b32 s{S_NL2E}, 0xbfb8aa3b")
    OA = V_ACC
    oz, oj = a.uid(name + "_oz"), a.uid(name + "_oj")
    a("s_nop 7")
    a(f"s_cmp_eq_u32 s{S_MODE}, 0")
    a(f"s_cbranch_scc1 {oz}")
    a(f"s_cmp_eq_u32 s{S_RND}, 0")
    a(f"s_cbranch_scc1 {oz}")
    for i in range(6):
        a(f"buffer_load_dwordx4 v[{OA+4*i}:{OA+4*i+3}], v13, s[{S_WS}:{S_WS+3}], s{S_SCR} offen offset:{16*i} sc1")
    a("s_waitcnt vmcnt(0)")
    a(f"s_branch {oj}")
    a.label(oz)
    for i in range(24):
        a(f"v_mov_b32 v{OA+i}, 0")
    a.label(oj)
    a("s_mov_b32 s90, 0")
    a("s_waitcnt vmcnt(0) lgkmcnt(0)")
    a("s_barrier")
    stamp_at(a, stamps, "barA")
    rl, rd_ = a.uid(name + "_rl"), a.uid(name + "_rd")
    a.label(rl)
    parts = ((0, S_PART, S_RA, 14, 88), (1, S_PARTB, S_RB, 15, 89))
    for ph, part, rr, va, flag in parts:
        sk = a.uid(name + "_rs")
        a(f"s_cmp_eq_u32 s{rr}, s90")
        a(f"s_cselect_b32 s{flag}, s{part}, 0")
        a(f"s_cmp_eq_u32 s{flag}, 0")
        a(f"s_cbranch_scc1 {sk}")
        b = V_RAW + 4 * ph
        a(f"ds_read_b128 v[{b}:{b+3}], v{va} offset:{ph*1024}")
        a.label(sk)
    a("s_waitcnt lgkmcnt(0)")
    for ph, part, rr, va, flag in parts:
        sk = a.uid(name + "_rs")
        a(f"s_cmp_eq_u32 s{flag}, 0")
        a(f"s_cbranch_scc1 {sk}")
        b = V_RAW + 4 * ph
        for i in range(4):
            a(f"v_lshlrev_b32 v{V_T+2*i}, 16, v{b+i}")
            a(f"v_and_b32 v{V_T+2*i+1}, 0xffff0000, v{b+i}")
        for i in range(8):
            a(f"v_add_f32 v{V_T+i}, v{V_T+i}, v{V_PT+8*ph+i}")
        for i in range(4):
            a(f"v_cvt_pk_bf16_f32 v{b+i}, v{V_T+2*i}, v{V_T+2*i+1}")
        a(f"ds_write_b128 v{va}, v[{b}:{b+3}] offset:{ph*1024}")
        a.label(sk)
    a(f"s_cmp_eq_u32 s{S_RUN}, 0")
    a(f"s_cbranch_scc1 {rd_}")
    a(f"s_lshl_b32 s91, s{S_RUN}, 1")
    a(f"s_and_b32 s{S_RUN}, s{S_RUN}, s91")
    a("s_add_u32 s90, s90, 1")
    a("s_waitcnt lgkmcnt(0)")
    a("s_barrier")
    a(f"s_branch {rl}")
    a.label(rd_)
    a("s_waitcnt lgkmcnt(0)")
    a("s_barrier")
    stamp_at(a, stamps, 'pdone')

    def breads(mt, b):
        for si in range(4):
            for ks in range(2):
                va, off = (8 + si, mt * 16 * P_PITCH) if mt < 2 else (16 + si, 0)
                a(f"ds_read_b128 v[{b+8*si+4*ks}:{b+8*si+4*ks+3}], v{va} offset:{off + ks*64}")

    def sigmoid_ops(mt):
        g, o = V_W + 8 * mt, OA + 8 * mt
        ops = [f"v_mul_f32 v{g+r}, s{S_NL2E}, v{o+r}" for r in range(8)]
        ops += [f"v_exp_f32 v{g+r}, v{g+r}" for r in range(8)]
        ops += [f"v_add_f32 v{g+r}, 1.0, v{g+r}" for r in range(8)]
        ops += [f"v_rcp_f32 v{g+r}, v{g+r}" for r in range(8)]
        return ops

    def gate_write(mt):
        g = V_W + 8 * mt
        a("s_nop 0")
        for hf in range(2):
            a(f"ds_write_b128 v20, v[{g+4*hf}:{g+4*hf+3}] offset:{mt*16*G_PITCH + hf*16}")

    def mfmas(mt, b, fill=()):
        fill = list(fill)
        k = 0
        for si in range(4):
            for ks in range(2):
                wf = V_WF + 16 * SI_BLOCK[si] + 8 * ks
                for hf in range(2):
                    o = OA + 8 * mt + 4 * hf
                    a(f"v_mfma_f32_16x16x32_bf16 v[{o}:{o+3}], v[{wf+4*hf}:{wf+4*hf+3}], v[{b+8*si+4*ks}:{b+8*si+4*ks+3}], v[{o}:{o+3}]")
                    if fill and k == 0:
                        a("s_nop 6")
                    for _ in range(2):
                        if fill:
                            a(fill.pop(0))
                    k += 1
        assert not fill

    def gemm(gate):
        breads(0, V_RAW)
        breads(1, V_FRAG)
        a("s_waitcnt lgkmcnt(8)")
        mfmas(0, V_RAW)
        breads(2, V_RAW)
        a("s_waitcnt lgkmcnt(8)")
        mfmas(1, V_FRAG, sigmoid_ops(0) if gate else ())
        if gate:
            gate_write(0)
        a(f"s_waitcnt lgkmcnt({2 if gate else 0})")
        mfmas(2, V_RAW, sigmoid_ops(1) if gate else ())
        if gate:
            gate_write(1)
            a("s_nop 7")
            for op in sigmoid_ops(2):
                a(op)
            gate_write(2)

    fin = name + "_fin"
    nextround = name + "_nextround"
    plain, og0done = a.uid(name + "_plain"), a.uid(name + "_og0done")
    a(f"s_cmp_lg_u32 s{S_OG}, 0")
    a(f"s_cbranch_scc1 {plain}")
    a(f"s_cmp_eq_u32 s{S_MODE}, 0")
    a(f"s_cbranch_scc1 {plain}_g")
    a(f"s_cmp_lt_u32 s{S_RND}, {G1-1}")
    a(f"s_cbranch_scc1 {plain}")
    a.label(plain + "_g")
    gemm(True)
    stamp_at(a, stamps, "gemm")
    a("s_waitcnt lgkmcnt(0)")
    a("s_barrier")
    a(f"s_branch {og0done}")
    a.label(plain)
    gemm(False)
    stamp_at(a, stamps, "gemm")
    a(f"s_cmp_eq_u32 s{S_MODE}, 0")
    a(f"s_cbranch_scc1 {fin}")
    a(f"s_add_u32 s{S_RND}, s{S_RND}, 1")
    a(f"s_cmp_ge_u32 s{S_RND}, {G1}")
    a(f"s_cbranch_scc1 {fin}")
    a("s_nop 7")
    for i in range(6):
        a(f"buffer_store_dwordx4 v[{OA+4*i}:{OA+4*i+3}], v13, s[{S_WS}:{S_WS+3}], s{S_SCR} offen offset:{16*i} sc1")
    a(f"s_branch {nextround}")
    a.label(slow)
    weight_transfers(a, name)
    a("s_waitcnt vmcnt(0) lgkmcnt(0)")
    a("s_barrier")
    weight_frag_addr(a)
    weight_frags(a, name + "_s")
    a("s_waitcnt lgkmcnt(0)")
    a("s_barrier")
    a(f"s_mov_b32 s{S_MODE}, 1")
    a(f"s_mov_b32 s{S_RND}, 0")
    a.label(nextround)
    a("s_waitcnt vmcnt(0) lgkmcnt(0)")
    a("s_barrier")
    a("v_lshlrev_b32 v1, 2, v0")
    a("v_mov_b32 v2, 0")
    a("v_cmp_gt_u32 vcc, 80, v0")
    a("s_and_b64 exec, exec, vcc")
    a(f"ds_write_b32 v1, v2 offset:{L_CNT}")
    a("s_mov_b64 exec, -1")
    a(f"s_lshl_b32 s{S_T}, s{S_RND}, 10")
    a(f"s_lshl_b32 s{S_T+1}, s{S_BK}, 2")
    a(f"s_add_u32 s{S_T}, s{S_T}, s{S_T+1}")
    a(f"s_add_u32 s{S_T}, s{S_T}, {WS_TAB}")
    a("v_mov_b32 v1, 0")
    a(f"buffer_load_dword v1, v1, s[{S_WS}:{S_WS+3}], s{S_T} offen")
    a("s_waitcnt vmcnt(0) lgkmcnt(0)")
    a("v_lshrrev_b32 v2, 20, v1")
    a("v_and_b32 v1, 0xfffff, v1")
    for it in range(8):
        a(f"v_subrev_u32 v3, {it*K2_THREADS}, v2")
        a(f"v_max_i32 v3, 0, v3")
        a(f"v_min_u32 v3, {K2_THREADS}, v3")
        a(f"v_add_u32 v4, {it*K2_THREADS}, v1")
        a(f"v_lshl_or_b32 v{V_ENT+it}, v3, 20, v4")
    a(f"v_mov_b32 v{V_I}, v0")
    a("s_barrier")
    a(f"s_branch {rnd}")
    a.label(fin)
    a("s_barrier")
    for mt in range(3):
        for hf in range(2):
            g = V_RAW + 4 * (2 * mt + hf)
            a(f"ds_read_b128 v[{g}:{g+3}], v20 offset:{mt*16*G_PITCH + hf*16}")
    for mt in range(3):
        for hf in range(2):
            o = OA + 8 * mt + 4 * hf
            g = V_RAW + 4 * (2 * mt + hf)
            a(f"s_waitcnt lgkmcnt({5 - (2*mt+hf)})")
            for r in range(4):
                a(f"v_mul_f32 v{o+r}, v{o+r}, v{g+r}")
    a.label(og0done)
    stamp_at(a, stamps, "gate")
    a(f"v_cmp_gt_u32 vcc, s{S_NV}, v2")
    for mt in range(3):
        t = V_FRAG + 4 * mt
        for hf in range(2):
            o = OA + 8 * mt + 4 * hf
            a(f"v_cvt_pk_bf16_f32 v{t+2*hf}, v{o}, v{o+1}")
            a(f"v_cvt_pk_bf16_f32 v{t+2*hf+1}, v{o+2}, v{o+3}")
        if mt == 2:
            a("s_and_b64 exec, exec, vcc")
        a(f"buffer_store_dwordx4 v[{t}:{t+3}], v{21+mt}, s[{S_OUT}:{S_OUT+3}], s{S_OUTB} offen {stflag}")
    if stamps:
        a("s_mov_b64 exec, -1")
        stamp_at(a, stamps, "issued")
        a("s_waitcnt vmcnt(0)")
        stamp_at(a, stamps, "done")
        a("s_waitcnt lgkmcnt(0)")
        a("s_mov_b64 exec, 1")
        a("v_mov_b32 v1, 0")
        a("s_mov_b32 s4, s98")
        for k in range(8):
            a(f"v_mov_b32 v{8+k}, s{4+k}")
        a(f"v_mov_b32 v16, s{S_NG}")
        a(f"buffer_store_dword v16, v1, s[{S_WS}:{S_WS+3}], s{S_ST+4} offen offset:32")
        a(f"buffer_store_dwordx4 v[8:11], v1, s[{S_WS}:{S_WS+3}], s{S_ST+4} offen")
        a(f"buffer_store_dwordx4 v[12:15], v1, s[{S_WS}:{S_WS+3}], s{S_ST+4} offen offset:16")
    a.label(done)
    a("s_endpgm")
    kernel_desc(a, name, 256, sgpr=102)
    return (name, 256, 102, K2_THREADS)


if __name__ == "__main__":
    from gen_k1 import gen_k1
    a = Asm()
    a('.amdgcn_target "amdgcn-amd-amdhsa--gfx950"')
    ks = [gen_k1(a, "part_kernel", stflag="sc1", ldflag="nt"),
          gen_k2(a, "main_kernel", prio=(4,), stflag="sc1", pf2=32), gen_k2(a, "mains_kernel", stamps=True, prio="swap", stflag="nt", pf2=32),
          gen_k2(a, "mainq_kernel", stamps=True, prio=(4,), stflag="sc1", pf2=32),
          gen_k2(a, "mainpro_kernel", stamps="pro", prio=(4,), stflag="sc1", pf2=32),
          ]
    metadata(a, ks, 96)
    open("k12.s", "w").write(a.text())
```

```python
from asmlib import *
from gen_k1 import (E, N, G1, CH, NBK, WS_REC, WS_LOC, WS_TAB, WS_L32, WS_END, WS_STAMP, srd, wave_scan)

K2_THREADS = 512
CAP = 2944
WS_SCR = 16 << 20
WS_SCR_END = WS_SCR + NBK * K2_THREADS * 96
L_CNT = 0
L_FLAG = 256
L_WCNT = 264
L_PN = 288
L_MASK = 320
L_ONES = L_MASK + 33 * 64
L_RAD = 2816
L_RAW = L_RAD + 3072
L_P = L_RAW + CAP * 16
P_PITCH = 2080
L_W = L_P
L_GATE = L_P + 40 * P_PITCH
G_PITCH = 272
L_LB = L_GATE
L_XROW = L_GATE
K2_LDS = L_GATE + 16384
assert L_ONES + 320 <= L_RAD and L_P % 16 == 0 and L_GATE % 16 == 0 and K2_LDS <= 163840

V_TID = 0
V_AADDR, V_YADDR, V_YMASK, V_LBA, V_SADDR, V_MBASE, V_TMP = 1, 2, 3, 4, 5, 6, 7
V_IDX = 8
V_A = 24
V_AN = 28
V_M = 32
V_T = 228
V_RAW = 36
V_FRAG = 68
V_ACC = 100
V_W = 132
V_WF = 164
V_AF = 212
V_END = 252
V_PL = 253
V_WA = 4
V_PT = 236
V_PF = 254
V_X = 228
V_REC = 36
V_LOC = 72
V_RANK = 81
V_SEG = 90
V_I = 91
V_ENT = 92
V_L32 = 108
V_BP = 100
V_WPK = 116
S_B, S_WV = 2, 3
S_X, S_WS, S_WR, S_W0, S_W1, S_OUT, S_XP = 16, 20, 24, 28, 32, 36, 40
S_SELLO, S_SELHI = 44, 45
S_VAL = 46
S_E, S_CUR, S_CUR0, S_LO, S_HI, S_PART, S_PNODE = 64, 65, 66, 67, 68, 69, 70
S_NG, S_G32, S_GEND, S_LG, S_SOFF, S_POFF, S_FRESH, S_PH, S_LEFT = 75, 76, 77, 78, 79, 80, 81, 82, 83
S_T = 84
S_MODE, S_RND, S_NEWW, S_BK = 92, 93, 94, 95
S_LBW = 71
S_FORCE = 74
S_PFB = 12
S_SWP = 62
S_AGC, S_WRAP = 72, 73
S_OUTB, S_NV, S_SCR, S_OG, S_TP, S_NL2E = 56, 57, 58, 59, 60, 61
S_LOB, S_HIB, S_NGB, S_CUR0B, S_PARTB, S_PNODEB, S_RUN, S_RA, S_RB, S_RHOB, S_G = 46, 47, 48, 49, 50, 51, 52, 53, 54, 55, 13
S_ST = 96

PATHS = [
    {(0, 0): (0, 0), (0, 1): (3, 0), (1, 0): (2, 0), (1, 1): (1, 0), (2, 0): (2, 0), (2, 1): (4, 1), (3, 0): (2, 0), (3, 1): (4, 0)},
    {(0, 0): (3, 0), (0, 1): (3, 0), (1, 0): (4, 0), (1, 1): (4, 1), (2, 0): (1, 0), (2, 1): (4, 0), (3, 0): (4, 1), (3, 1): (1, 0)},
]


def path_const(ph):
    k = 0
    for q in range(4):
        for t in range(2):
            p, s = PATHS[ph][(q, t)]
            k |= (p | (s << 3)) << (4 * (2 * q + t))
    return k


OG_SLICES = [[0, 5, 10, 15], [1, 4, 14, 11], [2, 8, 7, 13], [3, 12, 9, 6]]
OG_BLOCKS = [[0, 8192, 8192], [16384, 24576, 32768]]
SI_BLOCK = [0, 1, 2, 2]


def radial_addr(a, ph, vdst, vsgn, vt):
    a(f"v_bfe_u32 v{vt}, v{V_TID}, 3, 3")
    a(f"v_lshlrev_b32 v{vt}, 2, v{vt}")
    a(f"s_mov_b32 s{S_T}, {path_const(ph)}")
    a(f"v_lshrrev_b32 v{vt}, v{vt}, s{S_T}")
    a(f"v_bfe_u32 v{vsgn}, v{vt}, 3, 1")
    a(f"v_and_b32 v{vt}, 7, v{vt}")
    a(f"v_lshlrev_b32 v{vt}, 7, v{vt}")
    a(f"v_and_b32 v{vdst}, 7, v{V_TID}")
    a(f"v_lshl_add_u32 v{vdst}, v{vdst}, 4, v{vt}")
    a(f"s_mov_b32 s{S_T}, 0x80008000")
    a(f"v_mul_lo_u32 v{vsgn}, v{vsgn}, s{S_T}")


def radial_fetch(a, ph):
    vaddr, vsgn, vt, pk = V_FRAG + 16, V_FRAG + 17, V_FRAG + 18, V_FRAG
    radial_addr(a, ph, vaddr, vsgn, vt)
    for d in range(4):
        a(f"ds_read_b128 v[{pk+4*d}:{pk+4*d+3}], v{vaddr} offset:{L_RAD + d*640}")
    for d in range(4):
        a(f"s_waitcnt lgkmcnt({3-d})")
        for i in range(4):
            a(f"v_xor_b32 v{pk+4*d+i}, v{pk+4*d+i}, v{vsgn}")
        for f in range(8):
            src = pk + 4 * d + (f >> 1)
            if f & 1:
                a(f"v_and_b32 v{V_W+4*f+d}, 0xffff0000, v{src}")
            else:
                a(f"v_lshlrev_b32 v{V_W+4*f+d}, 16, v{src}")


ONEVISIT = False
ATR = False
PK = False
PF3 = None
ABL = set()
EOFF = [j * 16 if j < 4 else 256 + (j - 4) * 16 for j in range(8)]


def read_idx(a, loop=False):
    for j in range(0 if (loop and 'noidx' in ABL) else 8):
        a(f"ds_read_u16 v{V_IDX+2*j}, v{V_SADDR} offset:{EOFF[j]}")


def issue_x(a, flag="", raw=None):
    raw = V_RAW if raw is None else raw
    for j in range(8):
        a(f"buffer_load_dwordx4 v[{raw+4*j}:{raw+4*j+3}], v[{V_IDX+2*j}:{V_IDX+2*j+1}], s[{S_X}:{S_X+3}], s{S_SOFF} idxen offen {flag}")


def advance_load_stream(a):
    a(f"s_sub_u32 s{S_LG}, s{S_LG}, 1")
    a(f"s_cmp_eq_u32 s{S_LG}, 0")
    a(f"s_cselect_b32 s{S_T}, s{S_WRAP}, 0x200")
    a(f"s_cselect_b32 s{S_LG}, s{S_NGB}, s{S_LG}")
    a(f"s_cselect_b32 s{S_SOFF}, 0x100, s{S_SOFF}")
    a(f"v_add_u32 v{V_SADDR}, s{S_T}, v{V_SADDR}")


def range_nodes(a):
    a(f"s_mov_b32 s{S_RUN}, 0")
    a(f"s_mov_b32 s{S_CUR0}, 0")
    a(f"s_mov_b32 s{S_CUR0B}, 0")
    a(f"s_mov_b32 s{S_T+3}, -1")
    for rho in range(8):
        a(f"s_mul_i32 s{S_T}, s{S_G}, {rho+1}")
        a(f"s_lshr_b32 s{S_T}, s{S_T}, 3")
        a(f"s_lshl_b32 s{S_T}, s{S_T}, 5")
        a(f"v_cmp_ge_u32 vcc, s{S_T}, v{V_END}")
        a("s_nop 1")
        a(f"s_bcnt1_i32_b64 s{S_T+1}, vcc")
        if rho >= 1:
            a(f"s_cmp_eq_u32 s{S_T+1}, s{S_T+3}")
            a(f"s_cselect_b32 s{S_T+2}, {1 << rho}, 0")
            a(f"s_cmp_lt_u32 s{S_T+1}, 40")
            a(f"s_cselect_b32 s{S_T+2}, s{S_T+2}, 0")
            a(f"s_or_b32 s{S_RUN}, s{S_RUN}, s{S_T+2}")
        if rho < 7:
            a(f"s_cmp_eq_u32 s{S_WV}, {rho+1}")
            a(f"s_cselect_b32 s{S_CUR0}, s{S_T+1}, s{S_CUR0}")
            a(f"s_cmp_eq_u32 s{S_RHOB}, {rho+1}")
            a(f"s_cselect_b32 s{S_CUR0B}, s{S_T+1}, s{S_CUR0B}")
        a(f"s_mov_b32 s{S_T+3}, s{S_T+1}")
    for lo, c0 in ((S_LO, S_CUR0), (S_LOB, S_CUR0B)):
        a(f"s_cmp_eq_u32 s{lo}, 0")
        a(f"s_cselect_b32 s{c0}, 0, s{c0}")
    for rho, r in ((S_WV, S_RA), (S_RHOB, S_RB)):
        a(f"s_not_b32 s{S_T}, s{S_RUN}")
        a(f"s_sub_u32 s{S_T+1}, 31, s{rho}")
        a(f"s_lshl_b32 s{S_T}, s{S_T}, s{S_T+1}")
        a(f"s_flbit_i32_b32 s{r}, s{S_T}")


def a_reads(a):
    af, yf = V_AF, V_AF + 8
    if ATR:
        a(f"ds_read_b64_tr_b16 v[{af+4}:{af+5}], v{V_AADDR}")
        a(f"ds_read_b64_tr_b16 v[{af+6}:{af+7}], v{V_AADDR} offset:256")
    for j in range(0 if 'noa' in ABL else 8):
        if not ATR:
            a(f"ds_read_u16_d16_hi v{af+j}, v{V_AADDR} offset:{EOFF[j]}")
        a(f"ds_read_u16_d16_hi v{yf+j}, v{V_YADDR} offset:{EOFF[j]}")
    a(f"s_sub_u32 s{S_AGC}, s{S_AGC}, 1")
    a(f"s_cmp_eq_u32 s{S_AGC}, 0")
    a(f"s_cselect_b32 s{S_T}, s{S_WRAP}, 0x200")
    a(f"s_cselect_b32 s{S_AGC}, s{S_NGB}, s{S_AGC}")
    a(f"v_add_u32 v{V_AADDR}, s{S_T}, v{V_AADDR}")
    a(f"v_and_b32 v{V_TMP}, s{S_T}, v{V_YMASK}")
    a(f"v_add_u32 v{V_YADDR}, v{V_TMP}, v{V_YADDR}")


def mask_read(a):
    a(f"s_sub_u32 s{S_T}, s{S_E}, s{S_G32}")
    a(f"s_min_u32 s{S_T}, s{S_T}, 32")
    a(f"s_lshl_b32 s{S_T}, s{S_T}, 6")
    a(f"v_add_u32 v{V_TMP}, s{S_T}, v{V_MBASE}")
    a(f"ds_read_b128 v[{V_M}:{V_M+3}], v{V_TMP}")


def a_finish(a, wait=0):
    af, yf = V_AF, V_AF + 8
    a(f"s_waitcnt lgkmcnt({wait})")
    if 'noafin' in ABL:
        return
    if ATR:
        for i in range(4):
            a(f"v_lshlrev_b32 v{af+2*i}, 16, v{af+4+i}")
            a(f"v_and_b32 v{af+2*i+1}, 0xffff0000, v{af+4+i}")
    if PK:
        for i in range(4):
            a(f"v_pk_mul_f32 v[{af+2*i}:{af+2*i+1}], v[{af+2*i}:{af+2*i+1}], v[{yf+2*i}:{yf+2*i+1}]")
    else:
        for j in range(8):
            a(f"v_mul_f32 v{af+j}, v{af+j}, v{yf+j}")
    for i in range(4):
        a(f"v_cvt_pk_bf16_f32 v{V_A+i}, v{af+2*i}, v{af+2*i+1}")


def mfma_block(a, va, fresh):
    if 'nomfma' in ABL:
        return
    for f in range(8):
        ac = V_ACC + 4 * f
        c = "0" if fresh else f"v[{ac}:{ac+3}]"
        a(f"v_mfma_f32_16x16x32_bf16 v[{ac}:{ac+3}], v[{va}:{va+3}], v[{V_FRAG+4*f}:{V_FRAG+4*f+3}], {c}")


def contract(a, dst):
    if 'noflush' in ABL:
        return
    for f in range(8):
        ac, w = V_ACC + 4 * f, V_W + 4 * f
        a(f"v_mul_f32 v{dst+f}, v{ac}, v{w}")
        for d in range(1, 4):
            a(f"v_fmac_f32 v{dst+f}, v{ac+d}, v{w+d}")


STAMP_SETS = {
    True: {"tab": 1, "records": 2, "sorted": 3, "mainend": 4, "pdone": 5, "issued": 6, "done": 7},
    "epi": {"mainend": 1, "barA": 2, "pdone": 3, "gemm": 4, "gate": 5, "issued": 6, "done": 7},
    "mid": {"sorted": 1, "xissued": 2, "loopstart": 3, "firstdata": 4, "phaseB": 5, "mainend": 6, "done": 7},
    "clk": {"phaseB": 2, "mainend": 4, "done": 7},
    "pro": {"tab": 1, "ent": 2, "ldissued": 3, "ranked": 4, "bar1": 5, "records": 6, "sorted": 7},
}


def stamp_at(a, stamps, key):
    if stamps and key in STAMP_SETS[stamps]:
        stamp_regs(a, STAMP_SETS[stamps][key])
        if stamps == "clk" and key != "done":
            a(f"s_memtime s[{S_ST}:{S_ST+1}]")
            a("s_waitcnt lgkmcnt(0)")
            a(f"s_mov_b32 s{4+STAMP_SETS[stamps][key]+1}, s{S_ST}")


def stamp_regs(a, k):
    a(f"s_memrealtime s[{S_ST}:{S_ST+1}]")
    a("s_waitcnt lgkmcnt(0)")
    a(f"s_mov_b32 s{4+k}, s{S_ST}")


def prefetch_x(a, ph, v0, v1):
    a(f"s_lshr_b32 s{S_T}, s2, 3")
    a(f"s_mul_i32 s{S_T}, s{S_T}, {313*512}")
    a(f"s_add_u32 s{S_T}, s{S_T}, {ph*256}")
    a(f"v_lshrrev_b32 v{v0}, 1, v{V_TID}")
    a(f"v_lshlrev_b32 v{v0}, 9, v{v0}")
    a(f"v_and_b32 v{v1}, 1, v{V_TID}")
    a(f"v_lshl_add_u32 v{v0}, v{v1}, 7, v{v0}")
    a(f"v_add_u32 v{v0}, s{S_T}, v{v0}")
    a(f"v_add_u32 v{v1}, {256*512}, v{v0}")
    a(f"v_cmp_gt_u32 vcc, {626-512}, v{V_TID}")
    a(f"v_mov_b32 v{V_TMP}, 0x7fffff00")
    a(f"buffer_load_dword v{v0}, v{v0}, s[{S_XP}:{S_XP+3}], 0 offen")
    a(f"v_cndmask_b32 v{v1}, v{V_TMP}, v{v1}, vcc")
    a(f"buffer_load_dword v{v1}, v{v1}, s[{S_XP}:{S_XP+3}], 0 offen")


def perm_tile(a, f):
    if 'noperm' in ABL:
        return
    dd, hi = f >> 1, f & 1
    for i in range(4):
        a(f"v_perm_b32 v{V_FRAG+4*f+i}, v{V_RAW+(2*i+1)*4+dd}, v{V_RAW+(2*i)*4+dd}, s{S_SELHI if hi else S_SELLO}")


def mfma_tile(a, f, va, fresh):
    if 'nomfma' in ABL:
        return
    ac = V_ACC + 4 * f
    c = "0" if fresh else f"v[{ac}:{ac+3}]"
    a(f"v_mfma_f32_16x16x32_bf16 v[{ac}:{ac+3}], v[{va}:{va+3}], v[{V_FRAG+4*f}:{V_FRAG+4*f+3}], {c}")


def contract_tile(a, f):
    if 'noflush' in ABL:
        return
    ac, w = V_ACC + 4 * f, V_W + 4 * f
    if PK:
        t = V_AN + 2 * (f & 1)
        a(f"v_pk_mul_f32 v[{t}:{t+1}], v[{ac}:{ac+1}], v[{w}:{w+1}]")
        a(f"v_pk_fma_f32 v[{t}:{t+1}], v[{ac+2}:{ac+3}], v[{w+2}:{w+3}], v[{t}:{t+1}]")
        a(f"v_add_f32 v{V_T+f}, v{t}, v{t+1}")
        return
    a(f"v_mul_f32 v{V_T+f}, v{ac}, v{w}")
    for d in range(1, 4):
        a(f"v_fmac_f32 v{V_T+f}, v{ac+d}, v{w+d}")


def next_node(a):
    a(f"s_add_u32 s{S_CUR}, s{S_CUR}, 1")
    a(f"v_readlane_b32 s{S_E}, v{V_END}, s{S_CUR}")
    a(f"v_add_u32 v{V_TMP}, s{S_POFF}, v{V_PL}")
    a(f"s_add_u32 s{S_POFF}, s{S_POFF}, {P_PITCH}")


def store_row(a):
    for i in range(4):
        a(f"v_cvt_pk_bf16_f32 v{V_T+i}, v{V_T+2*i}, v{V_T+2*i+1}")
    a(f"ds_write_b128 v{V_TMP}, v[{V_T}:{V_T+3}]")


def zero_acc(a):
    for i in range(32):
        a(f"v_mov_b32 v{V_ACC+i}, 0")


def visit(a, name, issue, xflag, loop, endrange, prio=None):
    pb, after, pbmore, pbtail = (a.uid(name + x) for x in ("_pb", "_after", "_more", "_pbt"))

    def gather_part(va):
        a("s_waitcnt vmcnt(0)")
        if prio == "crit":
            a("s_setprio 1")
        perm_tile(a, 0)
        for f in range(1, 8):
            perm_tile(a, f)
            mfma_tile(a, f - 1, va, False)
        if issue and 'noload' not in ABL:
            for j in range(2):
                a(f"buffer_load_dwordx4 v[{V_RAW+4*j}:{V_RAW+4*j+3}], v[{V_IDX+2*j}:{V_IDX+2*j+1}], s[{S_X}:{S_X+3}], s{S_SOFF} idxen offen {xflag}")
        else:
            a("s_nop 1")
        mfma_tile(a, 7, va, False)
        if issue:
            if 'noload' not in ABL:
                for j in range(2, 8):
                    a(f"buffer_load_dwordx4 v[{V_RAW+4*j}:{V_RAW+4*j+3}], v[{V_IDX+2*j}:{V_IDX+2*j+1}], s[{S_X}:{S_X+3}], s{S_SOFF} idxen offen {xflag}")
            if prio == "crit":
                a("s_setprio 0")
            advance_load_stream(a)
            read_idx(a, True)
            a_reads(a)

    a(f"s_add_u32 s{S_GEND}, s{S_G32}, 32")
    a(f"s_cmp_le_u32 s{S_E}, s{S_GEND}")
    a(f"s_cbranch_scc1 {pb}")
    gather_part(V_A)
    a.label(after)
    a(f"s_mov_b32 s{S_G32}, s{S_GEND}")
    a(f"s_cmp_ge_u32 s{S_G32}, s{S_HI}")
    a(f"s_cbranch_scc1 {endrange}")
    if issue:
        a.label(name + "_resume")
        if PF3:
            a(f"s_cmp_eq_u32 s{S_LEFT}, s{S_PFB}")
            a(f"s_cbranch_scc1 {name}_pf3")
            a.label(name + "_pf3r")
        if isinstance(prio, tuple):
            a(f"s_cmp_eq_u32 s{S_LEFT}, s{S_SWP}")
            a(f"s_cbranch_scc1 {name}_swp")
            a.label(name + "_swpr")
        mask_read(a)
        a_finish(a, 1)
        a(f"s_sub_u32 s{S_LEFT}, s{S_LEFT}, 1")
        a(f"s_cmp_eq_u32 s{S_LEFT}, 0")
        a(f"s_cbranch_scc0 {loop}")
        if ONEVISIT:
            for j in range(8):
                a(f"v_mov_b32 v{V_IDX+2*j}, 0xffff")
            a(f"s_branch {loop}")
        else:
            a(f"s_branch {name}_final")
    else:
        a(f"s_branch {endrange}")
    if issue and isinstance(prio, tuple):
        a.label(name + "_swp")
        set_prio(a, name, False)
        a(f"s_branch {name}_swpr")
    if issue and PF3:
        a.label(name + "_pf3")
        a(f"s_lshr_b32 s{S_T}, s2, 3")
        a(f"s_mul_i32 s{S_T}, s{S_T}, {313*512}")
        a(f"s_mul_i32 s{S_T+1}, s{S_WV}, {39*512}")
        a(f"s_add_u32 s{S_T}, s{S_T}, s{S_T+1}")
        a(f"s_add_u32 s{S_T}, s{S_T}, 256")
        a(f"v_and_b32 v{V_TMP}, 63, v0")
        a(f"v_lshrrev_b32 v{V_PF+1}, 1, v{V_TMP}")
        a(f"v_lshlrev_b32 v{V_PF+1}, 9, v{V_PF+1}")
        a(f"v_and_b32 v{V_PF}, 1, v{V_TMP}")
        a(f"v_lshl_add_u32 v{V_PF+1}, v{V_PF}, 7, v{V_PF+1}")
        a(f"v_cmp_gt_u32 vcc, {PF3[0]}, v{V_TMP}")
        a("s_and_b64 exec, exec, vcc")
        a(f"buffer_load_dword v{V_PF}, v{V_PF+1}, s[{S_XP}:{S_XP+3}], s{S_T} offen")
        a("s_mov_b64 exec, -1")
        a(f"s_branch {name}_pf3r")
    a.label(pb)
    a("s_waitcnt lgkmcnt(0)")
    for i in range(4):
        a(f"v_and_b32 v{V_AN+i}, v{V_A+i}, v{V_M+i}")
    for i in range(4):
        a(f"v_xor_b32 v{V_A+i}, v{V_A+i}, v{V_AN+i}")
    next_node(a)
    a(f"s_mov_b32 s{S_T+3}, s{S_G32}")
    gather_part(V_AN)
    a(f"s_sub_u32 s{S_T}, s{S_POFF}, {P_PITCH}")
    a(f"v_add_u32 v{V_TMP}, s{S_T}, v{V_PL}")
    a(f"s_cmp_le_u32 s{S_E}, s{S_GEND}")
    a(f"s_cbranch_scc1 {pbmore}")
    a.label(pbtail)
    for f in range(8):
        contract_tile(a, f)
        mfma_tile(a, f, V_A, True)
    store_row(a)
    a(f"s_branch {after}")
    a.label(pbmore)
    a("s_nop 7")
    for f in range(8):
        contract_tile(a, f)
    store_row(a)
    a(f"s_sub_u32 s{S_T}, s{S_E}, s{S_G32}")
    a(f"s_lshl_b32 s{S_T}, s{S_T}, 6")
    a(f"v_add_u32 v{V_TMP}, s{S_T}, v{V_MBASE}")
    a("s_waitcnt lgkmcnt(0)")
    a(f"ds_read_b128 v[{V_M}:{V_M+3}], v{V_TMP}")
    next_node(a)
    a("s_waitcnt lgkmcnt(0)")
    for i in range(4):
        a(f"v_and_b32 v{V_AN+i}, v{V_A+i}, v{V_M+i}")
    for i in range(4):
        a(f"v_xor_b32 v{V_A+i}, v{V_A+i}, v{V_AN+i}")
    a("s_nop 1")
    for f in range(8):
        mfma_tile(a, f, V_AN, True)
    a(f"s_cmp_le_u32 s{S_E}, s{S_GEND}")
    a(f"s_cbranch_scc1 {pbmore}")
    a("s_nop 7")
    a(f"s_branch {pbtail}")


def set_prio(a, name, hi_young):
    l0, l1 = a.uid(name + '_p0'), a.uid(name + '_p1')
    a(f"s_cmp_ge_u32 s{S_WV}, 4")
    a(f"s_cbranch_scc{0 if hi_young else 1} {l0}")
    a("s_setprio 1")
    a(f"s_branch {l1}")
    a.label(l0)
    a("s_setprio 0")
    a.label(l1)


def main_loop(a, name, xflag, endmain, prio=None, stamps=None):
    loop, endrange = name + "_loop", name + "_endrange"
    a(f"s_mov_b32 s{S_G32}, s{S_LO}")
    a(f"s_mov_b32 s{S_LG}, s{S_NG}")
    a(f"s_mov_b32 s{S_AGC}, s{S_NG}")
    a(f"s_mov_b32 s{S_SOFF}, 0")
    a(f"s_mov_b32 s{S_PH}, 0")
    a(f"s_sub_u32 s{S_T}, s{S_LOB}, s{S_HI}")
    a(f"s_add_u32 s{S_T}, s{S_T}, 32")
    a(f"s_lshl_b32 s{S_WRAP}, s{S_T}, 4")
    a(f"s_add_u32 s{S_LEFT}, s{S_NG}, s{S_NGB}")
    a(f"s_sub_u32 s{S_LEFT}, s{S_LEFT}, 1")
    if PF3:
        a(f"s_add_u32 s{S_PFB}, s{S_NGB}, {PF3[1]}")
    read_idx(a)
    a("s_waitcnt lgkmcnt(0)")
    weight_frags(a, name)
    issue_x(a, xflag)
    stamp_at(a, stamps, "xissued")
    advance_load_stream(a)
    range_nodes(a)
    a(f"s_mov_b32 s{S_CUR}, s{S_CUR0}")
    a(f"v_readlane_b32 s{S_E}, v{V_END}, s{S_CUR}")
    a(f"s_mul_i32 s{S_POFF}, s{S_CUR}, {P_PITCH}")
    radial_fetch(a, 0)
    read_idx(a)
    a_reads(a)
    mask_read(a)
    zero_acc(a)
    a_finish(a, 1)
    weight_frags_wait(a, name)
    if prio in ("swap", "young") or isinstance(prio, tuple):
        set_prio(a, name, True)
    if isinstance(prio, tuple):
        a(f"s_mul_i32 s{S_SWP}, s{S_NGB}, {prio[0]}")
        a(f"s_lshr_b32 s{S_SWP}, s{S_SWP}, 3")
    stamp_at(a, stamps, "loopstart")
    if stamps == "mid":
        a("s_waitcnt vmcnt(0)")
        stamp_at(a, stamps, "firstdata")
    a.label(loop)
    visit(a, name + "_v", True, xflag, loop, endrange, prio)
    if not ONEVISIT:
        a.label(name + "_v_final")
        visit(a, name + "_f", False, xflag, loop, endrange, prio)
    a.label(endrange)
    nopart = a.uid(name + "_nopart")
    a(f"s_cmp_eq_u32 s{S_E}, 0x7fffffff")
    a(f"s_cbranch_scc1 {nopart}")
    a("s_nop 7")
    for f in range(8):
        contract_tile(a, f)
    pb_, pj_ = a.uid(name + "_ptb"), a.uid(name + "_ptj")
    a(f"s_cmp_lg_u32 s{S_PH}, 0")
    a(f"s_cbranch_scc1 {pb_}")
    for i in range(8):
        a(f"v_mov_b32 v{V_PT+i}, v{V_T+i}")
    a(f"s_mov_b32 s{S_PART}, 1")
    a(f"s_mul_i32 s{S_PNODE}, s{S_CUR}, {P_PITCH}")
    a(f"s_branch {pj_}")
    a.label(pb_)
    for i in range(8):
        a(f"v_mov_b32 v{V_PT+8+i}, v{V_T+i}")
    a(f"s_mov_b32 s{S_PARTB}, 1")
    a(f"s_mul_i32 s{S_PNODEB}, s{S_CUR}, {P_PITCH}")
    a.label(pj_)
    a.label(nopart)
    a(f"s_cmp_lg_u32 s{S_PH}, 0")
    a(f"s_cbranch_scc1 {endmain}")
    a(f"s_mov_b32 s{S_PH}, 1")
    a(f"s_mov_b32 s{S_G32}, s{S_LOB}")
    a(f"s_mov_b32 s{S_HI}, s{S_HIB}")
    a(f"s_mov_b32 s{S_CUR}, s{S_CUR0B}")
    a(f"v_readlane_b32 s{S_E}, v{V_END}, s{S_CUR}")
    a(f"s_mul_i32 s{S_POFF}, s{S_CUR}, {P_PITCH}")
    a(f"s_add_u32 s{S_POFF}, s{S_POFF}, 1024")
    if prio == "swap":
        set_prio(a, name, False)
    stamp_at(a, stamps, "phaseB")
    radial_fetch(a, 1)
    zero_acc(a)
    a(f"s_branch {name}_v_resume")


def weight_transfers(a, name):
    a("; ---- output-GEMM weights to LDS (swizzled 32-byte pieces), radial weights to registers")
    a("v_and_b32 v8, 63, v0")
    a("v_lshrrev_b32 v9, 3, v8")
    a("v_bfe_u32 v10, v8, 1, 2")
    a("v_bfe_u32 v11, v8, 4, 1")
    a("v_xor_b32 v10, v10, v11")
    a("v_lshlrev_b32 v9, 7, v9")
    a("v_lshl_add_u32 v9, v10, 5, v9")
    a("v_and_b32 v10, 1, v8")
    a("v_lshl_add_u32 v9, v10, 4, v9")
    a("v_xor_b32 v10, 64, v9")
    a(f"s_lshl_b32 s{S_T+3}, s{S_WV}, 11")
    a(f"s_add_u32 s{S_T+4}, s{S_T+3}, {L_W}")
    a(f"s_mov_b32 m0, s{S_T+4}")
    a(f"s_add_u32 s{S_T+5}, s{S_T+3}, 1024")
    a(f"buffer_load_dwordx4 v9, s[{S_W0}:{S_W0+3}], s{S_T+3} offen lds")
    a(f"s_add_u32 s{S_T+4}, s{S_T+4}, 1024")
    a(f"s_mov_b32 m0, s{S_T+4}")
    a("s_nop 0")
    a(f"buffer_load_dwordx4 v10, s[{S_W0}:{S_W0+3}], s{S_T+5} offen lds")
    a(f"s_mul_i32 s{S_T+3}, s{S_WV}, 3072")
    for t in range(3):
        a(f"s_add_u32 s{S_T+5}, s{S_WV}, {t}")
        a(f"s_and_b32 s{S_T+5}, s{S_T+5}, 1")
        a(f"s_lshl_b32 s{S_T+5}, s{S_T+5}, 6")
        a(f"v_xor_b32 v11, s{S_T+5}, v9")
        a(f"s_add_u32 s{S_T+5}, s{S_T+3}, {t*1024}")
        a(f"s_add_u32 s{S_T+4}, s{S_T+5}, {L_W + 16384}")
        a(f"s_mov_b32 m0, s{S_T+4}")
        a("s_nop 0")
        a(f"buffer_load_dwordx4 v11, s[{S_W1}:{S_W1+3}], s{S_T+5} offen lds")
    a(f"s_mul_hi_u32 s{S_T+3}, s{S_WV}, 0x55555556")
    a(f"s_mul_i32 s{S_T+3}, s{S_T+3}, 3")
    a(f"s_sub_u32 s{S_T+3}, s{S_WV}, s{S_T+3}")
    a(f"s_lshl_b32 s{S_T+3}, s{S_T+3}, 10")
    a(f"s_add_u32 s{S_T+4}, s{S_T+3}, {L_RAD}")
    a(f"s_mov_b32 m0, s{S_T+4}")
    a("v_lshlrev_b32 v11, 4, v8")
    a(f"buffer_load_dwordx4 v11, s[{S_WR}:{S_WR+3}], s{S_T+3} offen lds")


def weight_frag_addr(a):
    t = V_X
    a(f"v_bfe_u32 v{t}, v0, 4, 2")
    a(f"v_bfe_u32 v{t+1}, v0, 2, 2")
    a(f"v_and_b32 v{t+2}, 3, v0")
    a(f"v_lshrrev_b32 v{t+4}, 1, v{t+1}")
    a(f"v_and_b32 v{t+5}, 1, v{t}")
    a(f"v_lshl_add_u32 v{t+4}, v{t+5}, 1, v{t+4}")
    a(f"s_and_b32 s{S_T}, s{S_WV}, 1")
    a(f"s_lshl_b32 s{S_T}, s{S_T}, 1")
    a(f"v_lshrrev_b32 v{t+5}, 1, v{t+2}")
    a(f"v_add_u32 v{t+5}, s{S_T}, v{t+5}")
    a(f"v_xor_b32 v{t+4}, v{t+5}, v{t+4}")
    a(f"v_lshlrev_b32 v{t+3}, 3, v{t}")
    a(f"v_add_u32 v{t+3}, v{t+3}, v{t+1}")
    a(f"v_lshlrev_b32 v{t+3}, 7, v{t+3}")
    a(f"v_lshl_add_u32 v{t+3}, v{t+4}, 5, v{t+3}")
    a(f"v_and_b32 v{t+5}, 1, v{t+2}")
    a(f"v_lshl_add_u32 v{t+3}, v{t+5}, 4, v{t+3}")
    a(f"v_add_u32 v{V_WA}, {L_W}, v{t+3}")


def weight_frags(a, name):
    nf2 = name + "_nf2"
    a(f"s_cmp_lg_u32 s{S_MODE}, 0")
    a(f"s_cbranch_scc1 {nf2}")
    a(f"s_cmp_lt_u32 s{S_WV}, 2")
    for bi in range(3):
        a(f"s_mov_b32 s{S_T+1}, {OG_BLOCKS[1][bi]}")
        a(f"s_cselect_b32 s{S_T+1}, {OG_BLOCKS[0][bi]}, s{S_T+1}")
        a(f"v_add_u32 v{V_TMP}, s{S_T+1}, v{V_WA}")
        for ks in range(2):
            for hf in range(2):
                r = V_WF + 16 * bi + 8 * ks + 4 * hf
                for rd in range(2):
                    a(f"ds_read_b64_tr_b16 v[{r+2*rd}:{r+2*rd+1}], v{V_TMP} offset:{rd*512 + ks*4096 + hf*8}")
    a(f"v_mov_b32 v{V_TMP}, {L_WCNT}")
    a(f"v_mov_b32 v{V_WA}, 1")
    a("s_mov_b64 exec, 1")
    a(f"ds_add_u32 v{V_TMP}, v{V_WA}")
    a("s_mov_b64 exec, -1")
    a.label(nf2)


def weight_frags_wait(a, name):
    done_, spin = name + "_wok", name + "_wspin"
    a(f"s_cmp_lg_u32 s{S_MODE}, 0")
    a(f"s_cbranch_scc1 {done_}")
    a(f"v_mov_b32 v{V_TMP}, {L_WCNT}")
    a.label(spin)
    a(f"ds_read_b32 v{V_WA}, v{V_TMP}")
    a("s_waitcnt lgkmcnt(0)")
    a(f"v_readfirstlane_b32 s{S_T}, v{V_WA}")
    a("s_nop 3")
    a(f"s_cmp_lt_u32 s{S_T}, 8")
    a(f"s_cbranch_scc1 {spin}")
    a.label(done_)


def gen_k2(a, name, stamps=False, dump=None, xflag="", pfa=False, pfb=False, stflag="", xcdmap=True, pfr=0, abl=(), prio=None, rflag='', pf2=0, pf3=None, pk=False, atr=False, onevisit=False):
    global PF3, PK, ATR, ONEVISIT
    ONEVISIT = onevisit
    PF3 = pf3
    PK = pk
    ATR = atr
    global ABL
    ABL = set(abl)
    a("; =====================================================================================")
    a("; =====================================================================================")
    kernel_header(a, name)
    done = name + "_done"
    a(f"s_cmp_ge_u32 s2, {NBK}")
    a(f"s_cbranch_scc1 {done}")
    if stamps:
        a("s_memrealtime s[98:99]")
    a("s_load_dwordx2 s[4:5], s[0:1], 0")
    a("s_load_dwordx4 s[8:11], s[0:1], 40")
    a("s_load_dwordx2 s[12:13], s[0:1], 56")
    a("s_load_dwordx2 s[14:15], s[0:1], 72")
    a("s_load_dwordx2 s[6:7], s[0:1], 88")
    a(f"v_lshrrev_b32 v1, 6, v0")
    if xcdmap:
        a(f"s_and_b32 s{S_BK}, s2, 7")
        a(f"s_lshl_b32 s{S_BK}, s{S_BK}, 5")
        a(f"s_lshr_b32 s{S_T}, s2, 3")
        a(f"s_or_b32 s{S_BK}, s{S_BK}, s{S_T}")
    else:
        a(f"s_mov_b32 s{S_BK}, s2")
    a(f"v_readfirstlane_b32 s{S_WV}, v1")
    a("; ---- descriptors")
    a("s_waitcnt lgkmcnt(0)")
    srd(a, S_WS, 6, WS_SCR_END)
    a(f"s_lshl_b32 s{S_T}, s{S_WV}, 15")
    a(f"s_lshl_b32 s{S_T+1}, s{S_BK}, 2")
    a(f"s_add_u32 s{S_T}, s{S_T}, s{S_T+1}")
    a(f"s_add_u32 s{S_T}, s{S_T}, {WS_TAB}")
    a("v_and_b32 v2, 31, v0")
    a("v_lshlrev_b32 v2, 10, v2")
    a(f"buffer_load_dword v{V_SEG}, v2, s[{S_WS}:{S_WS+3}], s{S_T} offen")
    a(f"s_lshl_b32 s{S_T}, s{S_WV}, 18")
    a(f"s_lshl_b32 s{S_T+1}, s{S_BK}, 5")
    a(f"s_add_u32 s{S_T}, s{S_T}, s{S_T+1}")
    a(f"s_add_u32 s{S_T}, s{S_T}, {WS_L32}")
    a("v_lshlrev_b32 v2, 3, v2")
    a(f"buffer_load_dwordx4 v[{V_L32}:{V_L32+3}], v2, s[{S_WS}:{S_WS+3}], s{S_T} offen")
    a(f"buffer_load_dwordx4 v[{V_L32+4}:{V_L32+7}], v2, s[{S_WS}:{S_WS+3}], s{S_T} offen offset:16")
    a("v_lshrrev_b32 v1, 4, v0")
    a("v_bfe_u32 v2, v0, 2, 2")
    a("v_lshlrev_b32 v2, 2, v2")
    a("v_and_b32 v3, 1, v0")
    a("v_lshl_add_u32 v2, v3, 1, v2")
    a("v_bfe_u32 v3, v0, 1, 1")
    a("v_lshl_add_u32 v2, v3, 4, v2")
    a("v_mov_b32 v4, 0")
    a("v_mov_b32 v5, 0xffff")
    a("v_cmp_lt_u32 vcc, v2, v1")
    a("s_nop 1")
    a("v_cndmask_b32 v6, v4, v5, vcc")
    a("v_add_u32 v2, 1, v2")
    a("v_mov_b32 v5, 0xffff0000")
    a("v_cmp_lt_u32 vcc, v2, v1")
    a("s_nop 1")
    a("v_cndmask_b32 v7, v4, v5, vcc")
    a("v_or_b32 v6, v6, v7")
    a("v_lshlrev_b32 v8, 2, v0")
    a(f"v_add_u32 v9, {L_MASK}, v8")
    a("ds_write_b32 v9, v6")
    a("v_mov_b32 v5, -1")
    a("v_mov_b32 v6, 0x3f803f80")
    a("v_cmp_gt_u32 vcc, 80, v0")
    a("s_and_b64 exec, exec, vcc")
    a(f"ds_write_b32 v8, v6 offset:{L_ONES}")
    a(f"ds_write_b32 v8, v4 offset:{L_CNT}")
    a("v_cmp_gt_u32 vcc, 16, v0")
    a("s_and_b64 exec, exec, vcc")
    a(f"ds_write_b32 v9, v5 offset:2048")
    a("s_mov_b64 exec, -1")
    if pfr:
        a(f"s_lshr_b32 s{S_T}, s2, 3")
        a(f"s_lshl_b32 s{S_T}, s{S_T}, 3")
        a(f"s_add_u32 s{S_T}, s{S_T}, s{S_WV}")
        a(f"s_mul_i32 s{S_T}, s{S_T}, {CH*16}")
        a(f"s_and_b32 s{S_T+1}, s2, 7")
        a(f"s_mul_i32 s{S_T+1}, s{S_T+1}, 5000")
        a(f"s_add_u32 s{S_T}, s{S_T}, s{S_T+1}")
        a(f"s_max_u32 s{S_T}, s{S_T}, {pfr}")
        a(f"s_sub_u32 s{S_T}, s{S_T}, {pfr}")
        a("v_and_b32 v2, 63, v0")
        a("v_lshlrev_b32 v2, 7, v2")
        a(f"v_mov_b32 v3, 0x7fffff00")
        a(f"v_cmp_gt_u32 vcc, {5000 + 2*pfr + 128}, v2")
        a("s_nop 1")
        a("v_cndmask_b32 v2, v3, v2, vcc")
        a(f"buffer_load_dword v{V_X+10}, v2, s[{S_WS}:{S_WS+3}], s{S_T} offen")
    if 'l1' in ABL:
        srd(a, S_X, 4, N * 512)
    else:
        srd(a, S_X, 4, N, stride=512)
    srd(a, S_XP, 4, N * 512)
    srd(a, S_WR, 8, 2560)
    srd(a, S_W0, 10, 16384)
    srd(a, S_W1, 12, 24576)
    srd(a, S_OUT, 14, N * 512)
    if stamps:
        a(f"s_lshl_b32 s{S_ST+4}, s2, 3")
        a(f"s_add_u32 s{S_ST+4}, s{S_ST+4}, s{S_WV}")
        a(f"s_lshl_b32 s{S_ST+4}, s{S_ST+4}, 6")
        a(f"s_add_u32 s{S_ST+4}, s{S_ST+4}, {WS_STAMP}")
    a(f"s_mov_b32 s{S_SELLO}, 0x05040100")
    a(f"s_mov_b32 s{S_SELHI}, 0x07060302")
    a(f"v_and_b32 v{V_I}, 15, v0")
    a("v_bfe_u32 v1, v0, 4, 2")
    a("v_lshlrev_b32 v5, 8, v1")
    a("v_lshlrev_b32 v1, 5, v1")
    a(f"s_lshl_b32 s{S_T}, s{S_WV}, 10")
    a(f"s_add_u32 s{S_LBW}, s{S_T}, {L_LB}")
    a(f"v_add3_u32 v{V_LBA}, v5, v{V_I}, s{S_LBW}")
    a("v_and_b32 v6, 31, v0")
    a("v_lshlrev_b32 v6, 5, v6")
    a(f"v_add_u32 v6, s{S_LBW}, v6")
    a("s_waitcnt lgkmcnt(0)")
    a("s_barrier")
    a(f"s_mov_b32 s{S_MODE}, 0")
    a("s_waitcnt vmcnt(0)")
    stamp_at(a, stamps, 'tab')
    a(f"ds_write_b128 v6, v[{V_L32}:{V_L32+3}]")
    a(f"ds_write_b128 v6, v[{V_L32+4}:{V_L32+7}] offset:16")
    for it in range(8):
        a(f"v_add_u32 v{V_BP+it}, {4*it}, v1")
        a(f"ds_bpermute_b32 v{V_ENT+it}, v{V_BP+it}, v{V_SEG}")
    a("s_waitcnt lgkmcnt(0)")
    stamp_at(a, stamps, "ent")
    rnd = name + "_round"
    a.label(rnd)
    for it in range(8):
        e = V_ENT + it
        a(f"v_lshrrev_b32 v{V_X}, 20, v{e}")
        a(f"v_and_b32 v{e}, 0xfffff, v{e}")
        a(f"v_cmp_lt_u32 s[{S_VAL+2*it}:{S_VAL+2*it+1}], v{V_I}, v{V_X}")
        a(f"v_add_u32 v{e}, v{e}, v{V_I}")
        a(f"v_lshlrev_b32 v{V_RANK+it}, 4, v{e}")
    for it in range(8):
        a(f"s_mov_b64 exec, s[{S_VAL+2*it}:{S_VAL+2*it+1}]")
        a(f"buffer_load_dwordx4 v[{V_REC+4*it}:{V_REC+4*it+3}], v{V_RANK+it}, s[{S_WS}:{S_WS+3}], 0 offen {rflag}")
    a("s_mov_b64 exec, -1")
    noov = name + "_noov"
    a(f"s_mov_b32 s{S_T+2}, 0")
    a(f"s_mov_b32 s{S_FORCE}, 0")
    a(f"v_mov_b32 v{V_X+1}, 0")
    a(f"v_mov_b32 v{V_X+4}, s{S_LBW}")
    a(f"v_and_b32 v{V_X+2}, 63, v0")
    a(f"s_cmp_lg_u32 s{S_MODE}, 0")
    a(f"s_cbranch_scc1 {noov}")
    a(f"s_mov_b32 s{S_T+3}, {17 << 20}")
    a(f"v_cmp_le_u32 vcc, s{S_T+3}, v{V_SEG}")
    a(f"s_mov_b32 s{S_T+7}, {33 << 20}")
    a(f"s_mov_b32 s{S_T+4}, vcc_lo")
    a(f"v_cmp_le_u32 vcc, s{S_T+7}, v{V_SEG}")
    a("s_nop 1")
    a(f"s_cmp_eq_u32 vcc_lo, 0")
    a(f"s_cselect_b32 s{S_FORCE}, 0, 1")
    a(f"s_cselect_b32 s{S_T+4}, s{S_T+4}, 0")
    ovl = name + "_ovl"
    a.label(ovl)
    a(f"s_cmp_eq_u32 s{S_T+4}, 0")
    a(f"s_cbranch_scc1 {noov}")
    a(f"s_ff1_i32_b32 s{S_T+3}, s{S_T+4}")
    a(f"s_bitset0_b32 s{S_T+4}, s{S_T+3}")
    a(f"v_readlane_b32 s{S_T+5}, v{V_SEG}, s{S_T+3}")
    a(f"s_lshl_b32 s{S_T+3}, s{S_T+3}, 5")
    a(f"s_add_u32 s{S_T+3}, s{S_T+3}, s{S_LBW}")
    a(f"s_add_u32 s{S_T+3}, s{S_T+3}, 16")
    a(f"s_sub_u32 s{S_T+3}, s{S_T+3}, s{S_T+2}")
    a(f"s_lshr_b32 s{S_T+6}, s{S_T+5}, 20")
    a(f"s_sub_u32 s{S_T+6}, s{S_T+6}, 16")
    a(f"s_and_b32 s{S_T+5}, s{S_T+5}, 0xfffff")
    a(f"s_add_u32 s{S_T+5}, s{S_T+5}, 16")
    a(f"s_sub_u32 s{S_T+5}, s{S_T+5}, s{S_T+2}")
    a(f"v_subrev_u32 v{V_X+3}, s{S_T+2}, v{V_X+2}")
    a(f"v_cmp_gt_u32 vcc, s{S_T+6}, v{V_X+3}")
    a(f"v_add_u32 v{V_X+3}, s{S_T+5}, v{V_X+2}")
    a(f"v_add_u32 v{V_X+5}, s{S_T+3}, v{V_X+2}")
    a(f"s_add_u32 s{S_T+2}, s{S_T+2}, s{S_T+6}")
    a(f"v_cndmask_b32 v{V_X+1}, v{V_X+1}, v{V_X+3}, vcc")
    a(f"v_cndmask_b32 v{V_X+4}, v{V_X+4}, v{V_X+5}, vcc")
    a(f"s_branch {ovl}")
    a.label(noov)
    a(f"s_min_u32 s{S_T+3}, s{S_T+2}, 64")
    a(f"v_cmp_gt_u32 s[{S_VAL+16}:{S_VAL+17}], s{S_T+3}, v{V_X+2}")
    a(f"v_lshlrev_b32 v{V_RANK+8}, 4, v{V_X+1}")
    a("s_nop 3")
    a(f"s_mov_b64 exec, s[{S_VAL+16}:{S_VAL+17}]")
    a(f"buffer_load_dwordx4 v[{V_REC+32}:{V_REC+35}], v{V_RANK+8}, s[{S_WS}:{S_WS+3}], 0 offen {rflag}")
    a("s_mov_b64 exec, -1")
    stamp_at(a, stamps, "ldissued")
    lslow, ljoin = name + "_lslow", name + "_ljoin"
    a(f"s_cmp_lg_u32 s{S_MODE}, 0")
    a(f"s_cbranch_scc1 {lslow}")
    for it in range(8):
        a(f"ds_read_u8 v{V_LOC+it}, v{V_LBA} offset:{32*it}")
    a(f"ds_read_u8 v{V_LOC+8}, v{V_X+4}")
    a(f"s_cmp_gt_u32 s{S_T+2}, 64")
    a(f"s_cselect_b32 s{S_FORCE}, 1, s{S_FORCE}")
    a(f"s_cmp_eq_u32 s{S_FORCE}, 0")
    nofl = name + "_nofl"
    a(f"s_cbranch_scc1 {nofl}")
    a(f"v_mov_b32 v{V_X}, {L_FLAG}")
    a(f"v_mov_b32 v{V_X+1}, 1")
    a(f"ds_write_b32 v{V_X}, v{V_X+1}")
    a.label(nofl)
    a("s_waitcnt lgkmcnt(0)")
    a(f"s_branch {ljoin}")
    a.label(lslow)
    a(f"s_mov_b32 s{S_T+3}, {WS_LOC}")
    for it in range(8):
        a(f"s_mov_b64 exec, s[{S_VAL+2*it}:{S_VAL+2*it+1}]")
        a(f"buffer_load_ubyte v{V_LOC+it}, v{V_ENT+it}, s[{S_WS}:{S_WS+3}], s{S_T+3} offen")
    a("s_mov_b64 exec, -1")
    a("s_waitcnt vmcnt(0)")
    a.label(ljoin)
    a(f"v_mov_b32 v{V_X}, 1")
    for it in range(9):
        a(f"v_lshlrev_b32 v{V_LOC+it}, 2, v{V_LOC+it}")
    for it in range(9):
        a(f"s_mov_b64 exec, s[{S_VAL+2*it}:{S_VAL+2*it+1}]")
        a(f"ds_add_rtn_u32 v{V_RANK+it}, v{V_LOC+it}, v{V_X} offset:{L_CNT}")
    a("s_mov_b64 exec, -1")
    a("s_waitcnt lgkmcnt(0)")
    stamp_at(a, stamps, "ranked")
    a("s_barrier")
    stamp_at(a, stamps, "bar1")
    a("v_and_b32 v1, 63, v0")
    a("v_lshlrev_b32 v2, 2, v1")
    a(f"ds_read_b32 v3, v2 offset:{L_CNT}")
    a(f"v_mov_b32 v4, {L_FLAG}")
    a("ds_read_b32 v4, v4")
    a("s_waitcnt lgkmcnt(0)")
    a("v_mov_b32 v5, v3")
    wave_scan(a, 5)
    a("v_sub_u32 v7, v5, v3")
    a(f"v_readlane_b32 s{S_T+2}, v5, 63")
    a(f"v_readfirstlane_b32 s{S_T+3}, v4")
    a("v_cmp_gt_u32 vcc, 40, v1")
    a(f"v_mov_b32 v{V_END}, 0x7fffffff")
    a("s_nop 0")
    a(f"v_cndmask_b32 v{V_END}, v{V_END}, v5, vcc")
    a(f"s_add_u32 s{S_T+4}, s{S_T+2}, 31")
    a(f"s_lshr_b32 s{S_T+4}, s{S_T+4}, 5")
    a(f"s_max_u32 s{S_T+4}, s{S_T+4}, 1")
    slow = name + "_slow"
    fits = name + "_fits"
    a(f"s_cmp_lg_u32 s{S_MODE}, 0")
    a(f"s_cbranch_scc1 {fits}")
    a(f"s_cmp_gt_u32 s{S_T+4}, {CAP // 32}")
    a(f"s_cbranch_scc1 {slow}")
    a(f"s_cmp_lg_u32 s{S_T+3}, 0")
    a(f"s_cbranch_scc1 {slow}")
    a.label(fits)
    for it in range(9):
        a(f"ds_bpermute_b32 v{V_BP+it}, v{V_LOC+it}, v7")
    a(f"s_mov_b32 s{S_G}, s{S_T+4}")
    for it in range(9):
        a(f"s_waitcnt lgkmcnt({8-it})")
        a(f"v_add_u32 v{V_RANK+it}, v{V_RANK+it}, v{V_BP+it}")
        a(f"v_lshlrev_b32 v{V_RANK+it}, 4, v{V_RANK+it}")
    nowt = name + "_nowt"
    a(f"s_cmp_lg_u32 s{S_MODE}, 0")
    a(f"s_cbranch_scc1 {nowt}")
    weight_transfers(a, name)
    if pfa:
        prefetch_x(a, 0, V_PF, V_PF + 1)
    a.label(nowt)
    nlater = 6 + (2 if pfa else 0)
    for it in range(9):
        a(f"s_waitcnt vmcnt({8-it+nlater})")
        a(f"s_mov_b64 exec, s[{S_VAL+2*it}:{S_VAL+2*it+1}]")
        a(f"ds_write_b128 v{V_RANK+it}, v[{V_REC+4*it}:{V_REC+4*it+3}] offset:{L_RAW}")
    a("s_mov_b64 exec, -1")
    if pf2:
        wl = name + "_pf2"
        a(f"s_cmp_lg_u32 s{S_MODE}, 0")
        a(f"s_cbranch_scc1 {wl}")
        a(f"s_lshr_b32 s{S_T}, s2, 3")
        a(f"s_mul_i32 s{S_T}, s{S_T}, {313*512}")
        a(f"s_mul_i32 s{S_T+1}, s{S_WV}, {39*512}")
        a(f"s_add_u32 s{S_T}, s{S_T}, s{S_T+1}")
        a("v_and_b32 v8, 63, v0")
        a("v_lshrrev_b32 v9, 1, v8")
        a("v_lshlrev_b32 v9, 9, v9")
        a("v_and_b32 v10, 1, v8")
        a("v_lshl_add_u32 v9, v10, 7, v9")
        a(f"v_cmp_gt_u32 vcc, {pf2}, v8")
        a("s_and_b64 exec, exec, vcc")
        a(f"buffer_load_dword v{V_PF}, v9, s[{S_XP}:{S_XP+3}], s{S_T} offen")
        a("s_mov_b64 exec, -1")
        a.label(wl)
    stamp_at(a, stamps, 'records')
    a(f"s_sub_u32 s{S_RHOB}, 7, s{S_WV}")
    a(f"s_cmp_ge_u32 s{S_G}, 8")
    a(f"s_cselect_b32 s{S_RHOB}, s{S_RHOB}, s{S_WV}")
    for rho, lo, hi, ng in ((S_WV, S_LO, S_HI, S_NG), (S_RHOB, S_LOB, S_HIB, S_NGB)):
        a(f"s_mul_i32 s{lo}, s{rho}, s{S_G}")
        a(f"s_add_u32 s{hi}, s{lo}, s{S_G}")
        a(f"s_lshr_b32 s{lo}, s{lo}, 3")
        a(f"s_lshr_b32 s{hi}, s{hi}, 3")
        a(f"s_sub_u32 s{ng}, s{hi}, s{lo}")
        a(f"s_lshl_b32 s{lo}, s{lo}, 5")
        a(f"s_lshl_b32 s{hi}, s{hi}, 5")
    a(f"s_lshl_b32 s{S_T}, s{S_G}, 5")
    a(f"s_sub_u32 s{S_T}, s{S_T}, s{S_T+2}")
    a(f"v_add_u32 v2, s{S_T+2}, v1")
    a("v_lshlrev_b32 v2, 4, v2")
    a(f"v_mov_b32 v{V_X}, 0")
    a(f"v_mov_b32 v{V_X+1}, 0")
    a(f"v_mov_b32 v{V_X+2}, 0")
    a(f"v_mov_b32 v{V_X+3}, 0xffff0000")
    a(f"v_cmp_gt_u32 vcc, s{S_T}, v1")
    a("s_and_b64 exec, exec, vcc")
    a(f"ds_write_b128 v2, v[{V_X}:{V_X+3}] offset:{L_RAW}")
    a("s_mov_b64 exec, -1")
    a("v_bfe_u32 v8, v0, 4, 2")
    a(f"v_lshlrev_b32 v9, 6, v8")
    a(f"s_lshl_b32 s{S_T}, s{S_LO}, 4")
    a(f"s_add_u32 s{S_T}, s{S_T}, {L_RAW}")
    a(f"v_add_u32 v9, s{S_T}, v9")
    a(f"v_add_u32 v{V_SADDR}, 14, v9")
    if ATR:
        a("v_bfe_u32 v10, v0, 2, 2")
        a(f"v_lshl_add_u32 v{V_AADDR}, v10, 4, v9")
    else:
        a("v_and_b32 v10, 3, v0")
        a(f"v_lshl_add_u32 v{V_AADDR}, v10, 1, v9")
    a("v_bfe_u32 v10, v0, 2, 2")
    a("v_lshl_add_u32 v11, v10, 1, v9")
    a(f"v_add_u32 v11, 6, v11")
    a("v_cmp_eq_u32 vcc, 0, v10")
    a(f"v_mov_b32 v12, {L_ONES}")
    a(f"v_mov_b32 v13, -1")
    a(f"v_mov_b32 v14, 0")
    a(f"v_cndmask_b32 v{V_YADDR}, v11, v12, vcc")
    a(f"v_cndmask_b32 v{V_YMASK}, v13, v14, vcc")
    a(f"v_lshlrev_b32 v{V_MBASE}, 4, v8")
    a(f"v_add_u32 v{V_MBASE}, {L_MASK}, v{V_MBASE}")
    a("v_and_b32 v10, 15, v0")
    a("v_lshlrev_b32 v11, 7, v8")
    a("v_lshrrev_b32 v12, 3, v10")
    a("v_lshl_add_u32 v11, v12, 9, v11")
    a("v_and_b32 v12, 7, v10")
    a("v_lshl_add_u32 v11, v12, 4, v11")
    a(f"v_add_u32 v{V_PL}, {L_P}, v11")
    a("v_lshlrev_b32 v10, 4, v10")
    for j in range(8):
        a(f"v_mov_b32 v{V_IDX+2*j+1}, v10")
    a(f"s_mov_b32 s{S_PART}, 0")
    a(f"s_mov_b32 s{S_PARTB}, 0")
    weight_frag_addr(a)
    a(f"s_waitcnt vmcnt({2 if pfa else 1 if pf2 else 0}) lgkmcnt(0)")
    a("s_barrier")
    stamp_at(a, stamps, 'sorted')
    endmain = name + "_endmain"
    hasg = name + "_hasg"
    a(f"s_cmp_lg_u32 s{S_NG}, 0")
    a(f"s_cbranch_scc1 {hasg}")
    weight_frags(a, name + "_e")
    range_nodes(a)
    a(f"s_branch {endmain}")
    a.label(hasg)
    main_loop(a, name, xflag, endmain, prio, stamps)
    a.label(endmain)
    if prio:
        a("s_setprio 0")
    stamp_at(a, stamps, 'mainend')
    a("s_waitcnt lgkmcnt(0)")
    a(f"v_add_u32 v14, s{S_PNODE}, v{V_PL}")
    a(f"v_add_u32 v15, s{S_PNODEB}, v{V_PL}")
    a("v_bfe_u32 v1, v0, 4, 2")
    a("v_and_b32 v2, 15, v0")
    a(f"s_lshr_b32 s{S_OG}, s{S_WV}, 1")
    a(f"s_and_b32 s{S_TP}, s{S_WV}, 1")
    a(f"s_movk_i32 s{S_T}, {P_PITCH}")
    a(f"v_mul_u32_u24 v12, s{S_T}, v2")
    a("v_lshl_add_u32 v12, v1, 4, v12")
    a(f"v_add_u32 v12, {L_P}, v12")
    allsl = 0
    for og in range(4):
        for si in range(4):
            allsl |= OG_SLICES[og][si] << (16 * og + 4 * si)
    a(f"s_mov_b32 s88, {allsl & 0xffffffff}")
    a(f"s_mov_b32 s89, {allsl >> 32}")
    a(f"s_lshl_b32 s90, s{S_OG}, 4")
    a(f"s_lshr_b64 s[88:89], s[88:89], s90")
    for si in range(4):
        a(f"s_bfe_u32 s90, s88, {(4*si) | (4 << 16)}")
        a(f"s_lshl_b32 s90, s90, 7")
        a(f"v_add_u32 v{8+si}, s90, v12")
        a(f"v_add_u32 v{16+si}, {2*16*P_PITCH}, v{8+si}")
    a(f"s_mul_i32 s{S_SCR}, s{S_BK}, {K2_THREADS*96}")
    a(f"s_add_u32 s{S_SCR}, s{S_SCR}, {WS_SCR}")
    a("v_mul_u32_u24 v13, 96, v0")
    a(f"s_movk_i32 s{S_T}, {G_PITCH}")
    a(f"v_mul_u32_u24 v20, s{S_T}, v2")
    a("v_lshl_add_u32 v20, v1, 5, v20")
    a(f"s_lshl_b32 s{S_T}, s{S_TP}, 7")
    a(f"s_add_u32 s{S_T}, s{S_T}, {L_GATE}")
    a(f"v_add_u32 v20, s{S_T}, v20")
    a(f"s_mul_i32 s88, s{S_BK}, 625")
    a("s_add_u32 s89, s88, 15")
    a("s_lshr_b32 s89, s89, 4")
    a("s_add_u32 s88, s88, 640")
    a("s_lshr_b32 s88, s88, 4")
    a("s_sub_u32 s88, s88, s89")
    a(f"s_sub_u32 s{S_NV}, s88, 32")
    a("s_lshl_b32 s89, s89, 9")
    a(f"s_lshl_b32 s90, s{S_OG}, 7")
    a("s_add_u32 s89, s89, s90")
    a(f"s_lshl_b32 s90, s{S_TP}, 6")
    a(f"s_add_u32 s{S_OUTB}, s89, s90")
    a("v_lshlrev_b32 v21, 9, v2")
    a("v_lshl_add_u32 v21, v1, 4, v21")
    a(f"v_add_u32 v22, {16*512}, v21")
    a(f"v_add_u32 v23, {32*512}, v21")
    a(f"s_mov_b32 s{S_NL2E}, 0xbfb8aa3b")
    OA = V_ACC
    oz, oj = a.uid(name + "_oz"), a.uid(name + "_oj")
    a("s_nop 7")
    a(f"s_cmp_eq_u32 s{S_MODE}, 0")
    a(f"s_cbranch_scc1 {oz}")
    a(f"s_cmp_eq_u32 s{S_RND}, 0")
    a(f"s_cbranch_scc1 {oz}")
    for i in range(6):
        a(f"buffer_load_dwordx4 v[{OA+4*i}:{OA+4*i+3}], v13, s[{S_WS}:{S_WS+3}], s{S_SCR} offen offset:{16*i} sc1")
    a("s_waitcnt vmcnt(0)")
    a(f"s_branch {oj}")
    a.label(oz)
    for i in range(24):
        a(f"v_mov_b32 v{OA+i}, 0")
    a.label(oj)
    a("s_mov_b32 s90, 0")
    a("s_waitcnt vmcnt(0) lgkmcnt(0)")
    a("s_barrier")
    stamp_at(a, stamps, "barA")
    rl, rd_ = a.uid(name + "_rl"), a.uid(name + "_rd")
    a.label(rl)
    parts = ((0, S_PART, S_RA, 14, 88), (1, S_PARTB, S_RB, 15, 89))
    for ph, part, rr, va, flag in parts:
        sk = a.uid(name + "_rs")
        a(f"s_cmp_eq_u32 s{rr}, s90")
        a(f"s_cselect_b32 s{flag}, s{part}, 0")
        a(f"s_cmp_eq_u32 s{flag}, 0")
        a(f"s_cbranch_scc1 {sk}")
        b = V_RAW + 4 * ph
        a(f"ds_read_b128 v[{b}:{b+3}], v{va} offset:{ph*1024}")
        a.label(sk)
    a("s_waitcnt lgkmcnt(0)")
    for ph, part, rr, va, flag in parts:
        sk = a.uid(name + "_rs")
        a(f"s_cmp_eq_u32 s{flag}, 0")
        a(f"s_cbranch_scc1 {sk}")
        b = V_RAW + 4 * ph
        for i in range(4):
            a(f"v_lshlrev_b32 v{V_T+2*i}, 16, v{b+i}")
            a(f"v_and_b32 v{V_T+2*i+1}, 0xffff0000, v{b+i}")
        for i in range(8):
            a(f"v_add_f32 v{V_T+i}, v{V_T+i}, v{V_PT+8*ph+i}")
        for i in range(4):
            a(f"v_cvt_pk_bf16_f32 v{b+i}, v{V_T+2*i}, v{V_T+2*i+1}")
        a(f"ds_write_b128 v{va}, v[{b}:{b+3}] offset:{ph*1024}")
        a.label(sk)
    a(f"s_cmp_eq_u32 s{S_RUN}, 0")
    a(f"s_cbranch_scc1 {rd_}")
    a(f"s_lshl_b32 s91, s{S_RUN}, 1")
    a(f"s_and_b32 s{S_RUN}, s{S_RUN}, s91")
    a("s_add_u32 s90, s90, 1")
    a("s_waitcnt lgkmcnt(0)")
    a("s_barrier")
    a(f"s_branch {rl}")
    a.label(rd_)
    a("s_waitcnt lgkmcnt(0)")
    a("s_barrier")
    stamp_at(a, stamps, 'pdone')

    def breads(mt, b):
        for si in range(4):
            for ks in range(2):
                va, off = (8 + si, mt * 16 * P_PITCH) if mt < 2 else (16 + si, 0)
                a(f"ds_read_b128 v[{b+8*si+4*ks}:{b+8*si+4*ks+3}], v{va} offset:{off + ks*64}")

    def sigmoid_ops(mt):
        g, o = V_W + 8 * mt, OA + 8 * mt
        ops = [f"v_mul_f32 v{g+r}, s{S_NL2E}, v{o+r}" for r in range(8)]
        ops += [f"v_exp_f32 v{g+r}, v{g+r}" for r in range(8)]
        ops += [f"v_add_f32 v{g+r}, 1.0, v{g+r}" for r in range(8)]
        ops += [f"v_rcp_f32 v{g+r}, v{g+r}" for r in range(8)]
        return ops

    def gate_write(mt):
        g = V_W + 8 * mt
        a("s_nop 0")
        for hf in range(2):
            a(f"ds_write_b128 v20, v[{g+4*hf}:{g+4*hf+3}] offset:{mt*16*G_PITCH + hf*16}")

    def mfmas(mt, b, fill=()):
        fill = list(fill)
        k = 0
        for si in range(4):
            for ks in range(2):
                wf = V_WF + 16 * SI_BLOCK[si] + 8 * ks
                for hf in range(2):
                    o = OA + 8 * mt + 4 * hf
                    a(f"v_mfma_f32_16x16x32_bf16 v[{o}:{o+3}], v[{wf+4*hf}:{wf+4*hf+3}], v[{b+8*si+4*ks}:{b+8*si+4*ks+3}], v[{o}:{o+3}]")
                    if fill and k == 0:
                        a("s_nop 6")
                    for _ in range(2):
                        if fill:
                            a(fill.pop(0))
                    k += 1
        assert not fill

    def gemm(gate):
        breads(0, V_RAW)
        breads(1, V_FRAG)
        a("s_waitcnt lgkmcnt(8)")
        mfmas(0, V_RAW)
        breads(2, V_RAW)
        a("s_waitcnt lgkmcnt(8)")
        mfmas(1, V_FRAG, sigmoid_ops(0) if gate else ())
        if gate:
            gate_write(0)
        a(f"s_waitcnt lgkmcnt({2 if gate else 0})")
        mfmas(2, V_RAW, sigmoid_ops(1) if gate else ())
        if gate:
            gate_write(1)
            a("s_nop 7")
            for op in sigmoid_ops(2):
                a(op)
            gate_write(2)

    fin = name + "_fin"
    nextround = name + "_nextround"
    plain, og0done = a.uid(name + "_plain"), a.uid(name + "_og0done")
    a(f"s_cmp_lg_u32 s{S_OG}, 0")
    a(f"s_cbranch_scc1 {plain}")
    a(f"s_cmp_eq_u32 s{S_MODE}, 0")
    a(f"s_cbranch_scc1 {plain}_g")
    a(f"s_cmp_lt_u32 s{S_RND}, {G1-1}")
    a(f"s_cbranch_scc1 {plain}")
    a.label(plain + "_g")
    gemm(True)
    stamp_at(a, stamps, "gemm")
    a("s_waitcnt lgkmcnt(0)")
    a("s_barrier")
    a(f"s_branch {og0done}")
    a.label(plain)
    gemm(False)
    stamp_at(a, stamps, "gemm")
    a(f"s_cmp_eq_u32 s{S_MODE}, 0")
    a(f"s_cbranch_scc1 {fin}")
    a(f"s_add_u32 s{S_RND}, s{S_RND}, 1")
    a(f"s_cmp_ge_u32 s{S_RND}, {G1}")
    a(f"s_cbranch_scc1 {fin}")
    a("s_nop 7")
    for i in range(6):
        a(f"buffer_store_dwordx4 v[{OA+4*i}:{OA+4*i+3}], v13, s[{S_WS}:{S_WS+3}], s{S_SCR} offen offset:{16*i} sc1")
    a(f"s_branch {nextround}")
    a.label(slow)
    weight_transfers(a, name)
    a("s_waitcnt vmcnt(0) lgkmcnt(0)")
    a("s_barrier")
    weight_frag_addr(a)
    weight_frags(a, name + "_s")
    a("s_waitcnt lgkmcnt(0)")
    a("s_barrier")
    a(f"s_mov_b32 s{S_MODE}, 1")
    a(f"s_mov_b32 s{S_RND}, 0")
    a.label(nextround)
    a("s_waitcnt vmcnt(0) lgkmcnt(0)")
    a("s_barrier")
    a("v_lshlrev_b32 v1, 2, v0")
    a("v_mov_b32 v2, 0")
    a("v_cmp_gt_u32 vcc, 80, v0")
    a("s_and_b64 exec, exec, vcc")
    a(f"ds_write_b32 v1, v2 offset:{L_CNT}")
    a("s_mov_b64 exec, -1")
    a(f"s_lshl_b32 s{S_T}, s{S_RND}, 10")
    a(f"s_lshl_b32 s{S_T+1}, s{S_BK}, 2")
    a(f"s_add_u32 s{S_T}, s{S_T}, s{S_T+1}")
    a(f"s_add_u32 s{S_T}, s{S_T}, {WS_TAB}")
    a("v_mov_b32 v1, 0")
    a(f"buffer_load_dword v1, v1, s[{S_WS}:{S_WS+3}], s{S_T} offen")
    a("s_waitcnt vmcnt(0) lgkmcnt(0)")
    a("v_lshrrev_b32 v2, 20, v1")
    a("v_and_b32 v1, 0xfffff, v1")
    for it in range(8):
        a(f"v_subrev_u32 v3, {it*K2_THREADS}, v2")
        a(f"v_max_i32 v3, 0, v3")
        a(f"v_min_u32 v3, {K2_THREADS}, v3")
        a(f"v_add_u32 v4, {it*K2_THREADS}, v1")
        a(f"v_lshl_or_b32 v{V_ENT+it}, v3, 20, v4")
    a(f"v_mov_b32 v{V_I}, v0")
    a("s_barrier")
    a(f"s_branch {rnd}")
    a.label(fin)
    a("s_barrier")
    for mt in range(3):
        for hf in range(2):
            g = V_RAW + 4 * (2 * mt + hf)
            a(f"ds_read_b128 v[{g}:{g+3}], v20 offset:{mt*16*G_PITCH + hf*16}")
    for mt in range(3):
        for hf in range(2):
            o = OA + 8 * mt + 4 * hf
            g = V_RAW + 4 * (2 * mt + hf)
            a(f"s_waitcnt lgkmcnt({5 - (2*mt+hf)})")
            for r in range(4):
                a(f"v_mul_f32 v{o+r}, v{o+r}, v{g+r}")
    a.label(og0done)
    stamp_at(a, stamps, "gate")
    a(f"v_cmp_gt_u32 vcc, s{S_NV}, v2")
    for mt in range(3):
        t = V_FRAG + 4 * mt
        for hf in range(2):
            o = OA + 8 * mt + 4 * hf
            a(f"v_cvt_pk_bf16_f32 v{t+2*hf}, v{o}, v{o+1}")
            a(f"v_cvt_pk_bf16_f32 v{t+2*hf+1}, v{o+2}, v{o+3}")
        if mt == 2:
            a("s_and_b64 exec, exec, vcc")
        a(f"buffer_store_dwordx4 v[{t}:{t+3}], v{21+mt}, s[{S_OUT}:{S_OUT+3}], s{S_OUTB} offen {stflag}")
    if stamps:
        a("s_mov_b64 exec, -1")
        stamp_at(a, stamps, "issued")
        a("s_waitcnt vmcnt(0)")
        stamp_at(a, stamps, "done")
        a("s_waitcnt lgkmcnt(0)")
        a("s_mov_b64 exec, 1")
        a("v_mov_b32 v1, 0")
        a("s_mov_b32 s4, s98")
        for k in range(8):
            a(f"v_mov_b32 v{8+k}, s{4+k}")
        a(f"v_mov_b32 v16, s{S_NG}")
        a(f"buffer_store_dword v16, v1, s[{S_WS}:{S_WS+3}], s{S_ST+4} offen offset:32")
        a(f"buffer_store_dwordx4 v[8:11], v1, s[{S_WS}:{S_WS+3}], s{S_ST+4} offen")
        a(f"buffer_store_dwordx4 v[12:15], v1, s[{S_WS}:{S_WS+3}], s{S_ST+4} offen offset:16")
    a.label(done)
    a("s_endpgm")
    kernel_desc(a, name, 256, sgpr=102)
    return (name, 256, 102, K2_THREADS)


if __name__ == "__main__":
    from gen_k1 import gen_k1
    a = Asm()
    a('.amdgcn_target "amdgcn-amd-amdhsa--gfx950"')
    ks = [gen_k1(a, "part_kernel", stflag="sc1", ldflag="nt"),
          gen_k2(a, "main_kernel", prio=(4,), stflag="sc1", pf2=32, onevisit=True), gen_k2(a, "mains_kernel", stamps=True, prio="swap", stflag="nt", pf2=32),
          gen_k2(a, "mainq_kernel", stamps=True, prio=(4,), stflag="sc1", pf2=32),
          gen_k2(a, "maino_kernel", stamps=True, prio=(4,), stflag="sc1", pf2=32, onevisit=True),
          ]
    metadata(a, ks, 96)
    open("k12.s", "w").write(a.text())
```

```python
from asmlib import *
from gen_k1 import (E, N, G1, CH, NBK, WS_REC, WS_LOC, WS_TAB, WS_L32, WS_END, WS_STAMP, srd, wave_scan)

K2_THREADS = 512
CAP = 2944
WS_SCR = 16 << 20
WS_SCR_END = WS_SCR + NBK * K2_THREADS * 96
L_CNT = 0
L_FLAG = 256
L_WCNT = 264
L_PN = 288
L_MASK = 320
L_ONES = L_MASK + 33 * 64
L_RAD = 2816
L_RAW = L_RAD + 3072
L_P = L_RAW + CAP * 16
P_PITCH = 2080
L_W = L_P
L_GATE = L_P + 40 * P_PITCH
G_PITCH = 272
L_LB = L_GATE
L_XROW = L_GATE
K2_LDS = L_GATE + 16384
assert L_ONES + 320 <= L_RAD and L_P % 16 == 0 and L_GATE % 16 == 0 and K2_LDS <= 163840

V_TID = 0
V_AADDR, V_YADDR, V_YMASK, V_LBA, V_SADDR, V_MBASE, V_TMP = 1, 2, 3, 4, 5, 6, 7
V_IDX = 8
V_A = 24
V_AN = 28
V_M = 32
V_T = 228
V_RAW = 36
V_FRAG = 68
V_ACC = 100
V_W = 132
V_WF = 164
V_AF = 212
V_END = 252
V_PL = 253
V_WA = 4
V_PT = 236
V_PF = 254
V_X = 228
V_REC = 36
V_LOC = 72
V_RANK = 81
V_SEG = 90
V_I = 91
V_ENT = 92
V_L32 = 108
V_BP = 100
V_WPK = 116
S_B, S_WV = 2, 3
S_X, S_WS, S_WR, S_W0, S_W1, S_OUT, S_XP = 16, 20, 24, 28, 32, 36, 40
S_SELLO, S_SELHI = 44, 45
S_VAL = 46
S_E, S_CUR, S_CUR0, S_LO, S_HI, S_PART, S_PNODE = 64, 65, 66, 67, 68, 69, 70
S_NG, S_G32, S_GEND, S_LG, S_SOFF, S_POFF, S_FRESH, S_PH, S_LEFT = 75, 76, 77, 78, 79, 80, 81, 82, 83
S_T = 84
S_MODE, S_RND, S_NEWW, S_BK = 92, 93, 94, 95
S_LBW = 71
S_FORCE = 74
S_PFB = 12
S_SWP = 62
S_AGC, S_WRAP = 72, 73
S_OUTB, S_NV, S_SCR, S_OG, S_TP, S_NL2E = 56, 57, 58, 59, 60, 61
S_LOB, S_HIB, S_NGB, S_CUR0B, S_PARTB, S_PNODEB, S_RUN, S_RA, S_RB, S_RHOB, S_G = 46, 47, 48, 49, 50, 51, 52, 53, 54, 55, 13
S_ST = 96

PATHS = [
    {(0, 0): (0, 0), (0, 1): (3, 0), (1, 0): (2, 0), (1, 1): (1, 0), (2, 0): (2, 0), (2, 1): (4, 1), (3, 0): (2, 0), (3, 1): (4, 0)},
    {(0, 0): (3, 0), (0, 1): (3, 0), (1, 0): (4, 0), (1, 1): (4, 1), (2, 0): (1, 0), (2, 1): (4, 0), (3, 0): (4, 1), (3, 1): (1, 0)},
]


def path_const(ph):
    k = 0
    for q in range(4):
        for t in range(2):
            p, s = PATHS[ph][(q, t)]
            k |= (p | (s << 3)) << (4 * (2 * q + t))
    return k


OG_SLICES = [[0, 5, 10, 15], [1, 4, 14, 11], [2, 8, 7, 13], [3, 12, 9, 6]]
OG_BLOCKS = [[0, 8192, 8192], [16384, 24576, 32768]]
SI_BLOCK = [0, 1, 2, 2]


def radial_addr(a, ph, vdst, vsgn, vt):
    a(f"v_bfe_u32 v{vt}, v{V_TID}, 3, 3")
    a(f"v_lshlrev_b32 v{vt}, 2, v{vt}")
    a(f"s_mov_b32 s{S_T}, {path_const(ph)}")
    a(f"v_lshrrev_b32 v{vt}, v{vt}, s{S_T}")
    a(f"v_bfe_u32 v{vsgn}, v{vt}, 3, 1")
    a(f"v_and_b32 v{vt}, 7, v{vt}")
    a(f"v_lshlrev_b32 v{vt}, 7, v{vt}")
    a(f"v_and_b32 v{vdst}, 7, v{V_TID}")
    a(f"v_lshl_add_u32 v{vdst}, v{vdst}, 4, v{vt}")
    a(f"s_mov_b32 s{S_T}, 0x80008000")
    a(f"v_mul_lo_u32 v{vsgn}, v{vsgn}, s{S_T}")


def radial_fetch(a, ph):
    vaddr, vsgn, vt, pk = V_FRAG + 16, V_FRAG + 17, V_FRAG + 18, V_FRAG
    radial_addr(a, ph, vaddr, vsgn, vt)
    for d in range(4):
        a(f"ds_read_b128 v[{pk+4*d}:{pk+4*d+3}], v{vaddr} offset:{L_RAD + d*640}")
    for d in range(4):
        a(f"s_waitcnt lgkmcnt({3-d})")
        for i in range(4):
            a(f"v_xor_b32 v{pk+4*d+i}, v{pk+4*d+i}, v{vsgn}")
        for f in range(8):
            src = pk + 4 * d + (f >> 1)
            if f & 1:
                a(f"v_and_b32 v{V_W+4*f+d}, 0xffff0000, v{src}")
            else:
                a(f"v_lshlrev_b32 v{V_W+4*f+d}, 16, v{src}")


ONEVISIT = False
ATR = False
PK = False
PF3 = None
ABL = set()
EOFF = [j * 16 if j < 4 else 256 + (j - 4) * 16 for j in range(8)]


def read_idx(a, loop=False):
    for j in range(0 if (loop and 'noidx' in ABL) else 8):
        a(f"ds_read_u16 v{V_IDX+2*j}, v{V_SADDR} offset:{EOFF[j]}")


def issue_x(a, flag="", raw=None):
    raw = V_RAW if raw is None else raw
    for j in range(8):
        a(f"buffer_load_dwordx4 v[{raw+4*j}:{raw+4*j+3}], v[{V_IDX+2*j}:{V_IDX+2*j+1}], s[{S_X}:{S_X+3}], s{S_SOFF} idxen offen {flag}")


def advance_load_stream(a):
    a(f"s_sub_u32 s{S_LG}, s{S_LG}, 1")
    a(f"s_cmp_eq_u32 s{S_LG}, 0")
    a(f"s_cselect_b32 s{S_T}, s{S_WRAP}, 0x200")
    a(f"s_cselect_b32 s{S_LG}, s{S_NGB}, s{S_LG}")
    a(f"s_cselect_b32 s{S_SOFF}, 0x100, s{S_SOFF}")
    a(f"v_add_u32 v{V_SADDR}, s{S_T}, v{V_SADDR}")


def range_nodes(a):
    a(f"s_mov_b32 s{S_RUN}, 0")
    a(f"s_mov_b32 s{S_CUR0}, 0")
    a(f"s_mov_b32 s{S_CUR0B}, 0")
    a(f"s_mov_b32 s{S_T+3}, -1")
    for rho in range(8):
        a(f"s_mul_i32 s{S_T}, s{S_G}, {rho+1}")
        a(f"s_lshr_b32 s{S_T}, s{S_T}, 3")
        a(f"s_lshl_b32 s{S_T}, s{S_T}, 5")
        a(f"v_cmp_ge_u32 vcc, s{S_T}, v{V_END}")
        a("s_nop 1")
        a(f"s_bcnt1_i32_b64 s{S_T+1}, vcc")
        if rho >= 1:
            a(f"s_cmp_eq_u32 s{S_T+1}, s{S_T+3}")
            a(f"s_cselect_b32 s{S_T+2}, {1 << rho}, 0")
            a(f"s_cmp_lt_u32 s{S_T+1}, 40")
            a(f"s_cselect_b32 s{S_T+2}, s{S_T+2}, 0")
            a(f"s_or_b32 s{S_RUN}, s{S_RUN}, s{S_T+2}")
        if rho < 7:
            a(f"s_cmp_eq_u32 s{S_WV}, {rho+1}")
            a(f"s_cselect_b32 s{S_CUR0}, s{S_T+1}, s{S_CUR0}")
            a(f"s_cmp_eq_u32 s{S_RHOB}, {rho+1}")
            a(f"s_cselect_b32 s{S_CUR0B}, s{S_T+1}, s{S_CUR0B}")
        a(f"s_mov_b32 s{S_T+3}, s{S_T+1}")
    for lo, c0 in ((S_LO, S_CUR0), (S_LOB, S_CUR0B)):
        a(f"s_cmp_eq_u32 s{lo}, 0")
        a(f"s_cselect_b32 s{c0}, 0, s{c0}")
    for rho, r in ((S_WV, S_RA), (S_RHOB, S_RB)):
        a(f"s_not_b32 s{S_T}, s{S_RUN}")
        a(f"s_sub_u32 s{S_T+1}, 31, s{rho}")
        a(f"s_lshl_b32 s{S_T}, s{S_T}, s{S_T+1}")
        a(f"s_flbit_i32_b32 s{r}, s{S_T}")


def a_reads(a):
    af, yf = V_AF, V_AF + 8
    if ATR:
        a(f"ds_read_b64_tr_b16 v[{af+4}:{af+5}], v{V_AADDR}")
        a(f"ds_read_b64_tr_b16 v[{af+6}:{af+7}], v{V_AADDR} offset:256")
    for j in range(0 if 'noa' in ABL else 8):
        if not ATR:
            a(f"ds_read_u16_d16_hi v{af+j}, v{V_AADDR} offset:{EOFF[j]}")
        a(f"ds_read_u16_d16_hi v{yf+j}, v{V_YADDR} offset:{EOFF[j]}")
    a(f"s_sub_u32 s{S_AGC}, s{S_AGC}, 1")
    a(f"s_cmp_eq_u32 s{S_AGC}, 0")
    a(f"s_cselect_b32 s{S_T}, s{S_WRAP}, 0x200")
    a(f"s_cselect_b32 s{S_AGC}, s{S_NGB}, s{S_AGC}")
    a(f"v_add_u32 v{V_AADDR}, s{S_T}, v{V_AADDR}")
    a(f"v_and_b32 v{V_TMP}, s{S_T}, v{V_YMASK}")
    a(f"v_add_u32 v{V_YADDR}, v{V_TMP}, v{V_YADDR}")


def mask_read(a):
    a(f"s_sub_u32 s{S_T}, s{S_E}, s{S_G32}")
    a(f"s_min_u32 s{S_T}, s{S_T}, 32")
    a(f"s_lshl_b32 s{S_T}, s{S_T}, 6")
    a(f"v_add_u32 v{V_TMP}, s{S_T}, v{V_MBASE}")
    a(f"ds_read_b128 v[{V_M}:{V_M+3}], v{V_TMP}")


def a_finish(a, wait=0):
    af, yf = V_AF, V_AF + 8
    a(f"s_waitcnt lgkmcnt({wait})")
    if 'noafin' in ABL:
        return
    if ATR:
        for i in range(4):
            a(f"v_lshlrev_b32 v{af+2*i}, 16, v{af+4+i}")
            a(f"v_and_b32 v{af+2*i+1}, 0xffff0000, v{af+4+i}")
    if PK:
        for i in range(4):
            a(f"v_pk_mul_f32 v[{af+2*i}:{af+2*i+1}], v[{af+2*i}:{af+2*i+1}], v[{yf+2*i}:{yf+2*i+1}]")
    else:
        for j in range(8):
            a(f"v_mul_f32 v{af+j}, v{af+j}, v{yf+j}")
    for i in range(4):
        a(f"v_cvt_pk_bf16_f32 v{V_A+i}, v{af+2*i}, v{af+2*i+1}")


def mfma_block(a, va, fresh):
    if 'nomfma' in ABL:
        return
    for f in range(8):
        ac = V_ACC + 4 * f
        c = "0" if fresh else f"v[{ac}:{ac+3}]"
        a(f"v_mfma_f32_16x16x32_bf16 v[{ac}:{ac+3}], v[{va}:{va+3}], v[{V_FRAG+4*f}:{V_FRAG+4*f+3}], {c}")


def contract(a, dst):
    if 'noflush' in ABL:
        return
    for f in range(8):
        ac, w = V_ACC + 4 * f, V_W + 4 * f
        a(f"v_mul_f32 v{dst+f}, v{ac}, v{w}")
        for d in range(1, 4):
            a(f"v_fmac_f32 v{dst+f}, v{ac+d}, v{w+d}")


STAMP_SETS = {
    True: {"tab": 1, "records": 2, "sorted": 3, "mainend": 4, "pdone": 5, "issued": 6, "done": 7},
    "epi": {"mainend": 1, "barA": 2, "pdone": 3, "gemm": 4, "gate": 5, "issued": 6, "done": 7},
    "mid": {"sorted": 1, "xissued": 2, "loopstart": 3, "firstdata": 4, "phaseB": 5, "mainend": 6, "done": 7},
    "clk": {"phaseB": 2, "mainend": 4, "done": 7},
    "pro": {"tab": 1, "ent": 2, "ldissued": 3, "ranked": 4, "bar1": 5, "records": 6, "sorted": 7},
}


def stamp_at(a, stamps, key):
    if stamps and key in STAMP_SETS[stamps]:
        stamp_regs(a, STAMP_SETS[stamps][key])
        if stamps == "clk" and key != "done":
            a(f"s_memtime s[{S_ST}:{S_ST+1}]")
            a("s_waitcnt lgkmcnt(0)")
            a(f"s_mov_b32 s{4+STAMP_SETS[stamps][key]+1}, s{S_ST}")


def stamp_regs(a, k):
    a(f"s_memrealtime s[{S_ST}:{S_ST+1}]")
    a("s_waitcnt lgkmcnt(0)")
    a(f"s_mov_b32 s{4+k}, s{S_ST}")


def prefetch_x(a, ph, v0, v1):
    a(f"s_lshr_b32 s{S_T}, s2, 3")
    a(f"s_mul_i32 s{S_T}, s{S_T}, {313*512}")
    a(f"s_add_u32 s{S_T}, s{S_T}, {ph*256}")
    a(f"v_lshrrev_b32 v{v0}, 1, v{V_TID}")
    a(f"v_lshlrev_b32 v{v0}, 9, v{v0}")
    a(f"v_and_b32 v{v1}, 1, v{V_TID}")
    a(f"v_lshl_add_u32 v{v0}, v{v1}, 7, v{v0}")
    a(f"v_add_u32 v{v0}, s{S_T}, v{v0}")
    a(f"v_add_u32 v{v1}, {256*512}, v{v0}")
    a(f"v_cmp_gt_u32 vcc, {626-512}, v{V_TID}")
    a(f"v_mov_b32 v{V_TMP}, 0x7fffff00")
    a(f"buffer_load_dword v{v0}, v{v0}, s[{S_XP}:{S_XP+3}], 0 offen")
    a(f"v_cndmask_b32 v{v1}, v{V_TMP}, v{v1}, vcc")
    a(f"buffer_load_dword v{v1}, v{v1}, s[{S_XP}:{S_XP+3}], 0 offen")


def perm_tile(a, f):
    if 'noperm' in ABL:
        return
    dd, hi = f >> 1, f & 1
    for i in range(4):
        a(f"v_perm_b32 v{V_FRAG+4*f+i}, v{V_RAW+(2*i+1)*4+dd}, v{V_RAW+(2*i)*4+dd}, s{S_SELHI if hi else S_SELLO}")


def mfma_tile(a, f, va, fresh):
    if 'nomfma' in ABL:
        return
    ac = V_ACC + 4 * f
    c = "0" if fresh else f"v[{ac}:{ac+3}]"
    a(f"v_mfma_f32_16x16x32_bf16 v[{ac}:{ac+3}], v[{va}:{va+3}], v[{V_FRAG+4*f}:{V_FRAG+4*f+3}], {c}")


def contract_tile(a, f):
    if 'noflush' in ABL:
        return
    ac, w = V_ACC + 4 * f, V_W + 4 * f
    if PK:
        t = V_AN + 2 * (f & 1)
        a(f"v_pk_mul_f32 v[{t}:{t+1}], v[{ac}:{ac+1}], v[{w}:{w+1}]")
        a(f"v_pk_fma_f32 v[{t}:{t+1}], v[{ac+2}:{ac+3}], v[{w+2}:{w+3}], v[{t}:{t+1}]")
        a(f"v_add_f32 v{V_T+f}, v{t}, v{t+1}")
        return
    a(f"v_mul_f32 v{V_T+f}, v{ac}, v{w}")
    for d in range(1, 4):
        a(f"v_fmac_f32 v{V_T+f}, v{ac+d}, v{w+d}")


def next_node(a):
    a(f"s_add_u32 s{S_CUR}, s{S_CUR}, 1")
    a(f"v_readlane_b32 s{S_E}, v{V_END}, s{S_CUR}")
    a(f"v_add_u32 v{V_TMP}, s{S_POFF}, v{V_PL}")
    a(f"s_add_u32 s{S_POFF}, s{S_POFF}, {P_PITCH}")


def store_row(a):
    for i in range(4):
        a(f"v_cvt_pk_bf16_f32 v{V_T+i}, v{V_T+2*i}, v{V_T+2*i+1}")
    a(f"ds_write_b128 v{V_TMP}, v[{V_T}:{V_T+3}]")


def zero_acc(a):
    for i in range(32):
        a(f"v_mov_b32 v{V_ACC+i}, 0")


def visit(a, name, issue, xflag, loop, endrange, prio=None):
    pb, after, pbmore, pbtail = (a.uid(name + x) for x in ("_pb", "_after", "_more", "_pbt"))

    def gather_part(va):
        a("s_waitcnt vmcnt(0)")
        if prio == "crit":
            a("s_setprio 1")
        perm_tile(a, 0)
        for f in range(1, 8):
            perm_tile(a, f)
            mfma_tile(a, f - 1, va, False)
        if issue and 'noload' not in ABL:
            for j in range(2):
                a(f"buffer_load_dwordx4 v[{V_RAW+4*j}:{V_RAW+4*j+3}], v[{V_IDX+2*j}:{V_IDX+2*j+1}], s[{S_X}:{S_X+3}], s{S_SOFF} idxen offen {xflag}")
        else:
            a("s_nop 1")
        mfma_tile(a, 7, va, False)
        if issue:
            if 'noload' not in ABL:
                for j in range(2, 8):
                    a(f"buffer_load_dwordx4 v[{V_RAW+4*j}:{V_RAW+4*j+3}], v[{V_IDX+2*j}:{V_IDX+2*j+1}], s[{S_X}:{S_X+3}], s{S_SOFF} idxen offen {xflag}")
            if prio == "crit":
                a("s_setprio 0")
            advance_load_stream(a)
            read_idx(a, True)
            a_reads(a)

    a(f"s_add_u32 s{S_GEND}, s{S_G32}, 32")
    a(f"s_cmp_le_u32 s{S_E}, s{S_GEND}")
    a(f"s_cbranch_scc1 {pb}")
    gather_part(V_A)
    a.label(after)
    a(f"s_mov_b32 s{S_G32}, s{S_GEND}")
    a(f"s_cmp_ge_u32 s{S_G32}, s{S_HI}")
    a(f"s_cbranch_scc1 {endrange}")
    if issue:
        a.label(name + "_resume")
        if PF3:
            a(f"s_cmp_eq_u32 s{S_LEFT}, s{S_PFB}")
            a(f"s_cbranch_scc1 {name}_pf3")
            a.label(name + "_pf3r")
        if isinstance(prio, tuple):
            a(f"s_cmp_eq_u32 s{S_LEFT}, s{S_SWP}")
            a(f"s_cbranch_scc1 {name}_swp")
            a.label(name + "_swpr")
        mask_read(a)
        a_finish(a, 1)
        a(f"s_sub_u32 s{S_LEFT}, s{S_LEFT}, 1")
        a(f"s_cmp_eq_u32 s{S_LEFT}, 0")
        a(f"s_cbranch_scc0 {loop}")
        if ONEVISIT:
            for j in range(8):
                a(f"v_mov_b32 v{V_IDX+2*j}, 0xffff")
            a(f"s_branch {loop}")
        else:
            a(f"s_branch {name}_final")
    else:
        a(f"s_branch {endrange}")
    if issue and isinstance(prio, tuple):
        a.label(name + "_swp")
        set_prio(a, name, False)
        a(f"s_branch {name}_swpr")
    if issue and PF3:
        a.label(name + "_pf3")
        a(f"s_lshr_b32 s{S_T}, s2, 3")
        a(f"s_mul_i32 s{S_T}, s{S_T}, {313*512}")
        a(f"s_mul_i32 s{S_T+1}, s{S_WV}, {39*512}")
        a(f"s_add_u32 s{S_T}, s{S_T}, s{S_T+1}")
        a(f"s_add_u32 s{S_T}, s{S_T}, 256")
        a(f"v_and_b32 v{V_TMP}, 63, v0")
        a(f"v_lshrrev_b32 v{V_PF+1}, 1, v{V_TMP}")
        a(f"v_lshlrev_b32 v{V_PF+1}, 9, v{V_PF+1}")
        a(f"v_and_b32 v{V_PF}, 1, v{V_TMP}")
        a(f"v_lshl_add_u32 v{V_PF+1}, v{V_PF}, 7, v{V_PF+1}")
        a(f"v_cmp_gt_u32 vcc, {PF3[0]}, v{V_TMP}")
        a("s_and_b64 exec, exec, vcc")
        a(f"buffer_load_dword v{V_PF}, v{V_PF+1}, s[{S_XP}:{S_XP+3}], s{S_T} offen")
        a("s_mov_b64 exec, -1")
        a(f"s_branch {name}_pf3r")
    a.label(pb)
    a("s_waitcnt lgkmcnt(0)")
    for i in range(4):
        a(f"v_and_b32 v{V_AN+i}, v{V_A+i}, v{V_M+i}")
    for i in range(4):
        a(f"v_xor_b32 v{V_A+i}, v{V_A+i}, v{V_AN+i}")
    next_node(a)
    a(f"s_mov_b32 s{S_T+3}, s{S_G32}")
    gather_part(V_AN)
    a(f"s_sub_u32 s{S_T}, s{S_POFF}, {P_PITCH}")
    a(f"v_add_u32 v{V_TMP}, s{S_T}, v{V_PL}")
    a(f"s_cmp_le_u32 s{S_E}, s{S_GEND}")
    a(f"s_cbranch_scc1 {pbmore}")
    a.label(pbtail)
    for f in range(8):
        contract_tile(a, f)
        mfma_tile(a, f, V_A, True)
    store_row(a)
    a(f"s_branch {after}")
    a.label(pbmore)
    a("s_nop 7")
    for f in range(8):
        contract_tile(a, f)
    store_row(a)
    a(f"s_sub_u32 s{S_T}, s{S_E}, s{S_G32}")
    a(f"s_lshl_b32 s{S_T}, s{S_T}, 6")
    a(f"v_add_u32 v{V_TMP}, s{S_T}, v{V_MBASE}")
    a("s_waitcnt lgkmcnt(0)")
    a(f"ds_read_b128 v[{V_M}:{V_M+3}], v{V_TMP}")
    next_node(a)
    a("s_waitcnt lgkmcnt(0)")
    for i in range(4):
        a(f"v_and_b32 v{V_AN+i}, v{V_A+i}, v{V_M+i}")
    for i in range(4):
        a(f"v_xor_b32 v{V_A+i}, v{V_A+i}, v{V_AN+i}")
    a("s_nop 1")
    for f in range(8):
        mfma_tile(a, f, V_AN, True)
    a(f"s_cmp_le_u32 s{S_E}, s{S_GEND}")
    a(f"s_cbranch_scc1 {pbmore}")
    a("s_nop 7")
    a(f"s_branch {pbtail}")


def set_prio(a, name, hi_young):
    l0, l1 = a.uid(name + '_p0'), a.uid(name + '_p1')
    a(f"s_cmp_ge_u32 s{S_WV}, 4")
    a(f"s_cbranch_scc{0 if hi_young else 1} {l0}")
    a("s_setprio 1")
    a(f"s_branch {l1}")
    a.label(l0)
    a("s_setprio 0")
    a.label(l1)


def main_loop(a, name, xflag, endmain, prio=None, stamps=None):
    loop, endrange = name + "_loop", name + "_endrange"
    a(f"s_mov_b32 s{S_G32}, s{S_LO}")
    a(f"s_mov_b32 s{S_LG}, s{S_NG}")
    a(f"s_mov_b32 s{S_AGC}, s{S_NG}")
    a(f"s_mov_b32 s{S_SOFF}, 0")
    a(f"s_mov_b32 s{S_PH}, 0")
    a(f"s_sub_u32 s{S_T}, s{S_LOB}, s{S_HI}")
    a(f"s_add_u32 s{S_T}, s{S_T}, 32")
    a(f"s_lshl_b32 s{S_WRAP}, s{S_T}, 4")
    a(f"s_add_u32 s{S_LEFT}, s{S_NG}, s{S_NGB}")
    a(f"s_sub_u32 s{S_LEFT}, s{S_LEFT}, 1")
    if PF3:
        a(f"s_add_u32 s{S_PFB}, s{S_NGB}, {PF3[1]}")
    read_idx(a)
    a("s_waitcnt lgkmcnt(0)")
    weight_frags(a, name)
    issue_x(a, xflag)
    stamp_at(a, stamps, "xissued")
    advance_load_stream(a)
    range_nodes(a)
    a(f"s_mov_b32 s{S_CUR}, s{S_CUR0}")
    a(f"v_readlane_b32 s{S_E}, v{V_END}, s{S_CUR}")
    a(f"s_mul_i32 s{S_POFF}, s{S_CUR}, {P_PITCH}")
    radial_fetch(a, 0)
    read_idx(a)
    a_reads(a)
    mask_read(a)
    zero_acc(a)
    a_finish(a, 1)
    weight_frags_wait(a, name)
    if prio in ("swap", "young") or isinstance(prio, tuple):
        set_prio(a, name, True)
    if isinstance(prio, tuple):
        a(f"s_mul_i32 s{S_SWP}, s{S_NGB}, {prio[0]}")
        a(f"s_lshr_b32 s{S_SWP}, s{S_SWP}, 3")
    stamp_at(a, stamps, "loopstart")
    if stamps == "mid":
        a("s_waitcnt vmcnt(0)")
        stamp_at(a, stamps, "firstdata")
    a.label(loop)
    visit(a, name + "_v", True, xflag, loop, endrange, prio)
    if not ONEVISIT:
        a.label(name + "_v_final")
        visit(a, name + "_f", False, xflag, loop, endrange, prio)
    a.label(endrange)
    nopart = a.uid(name + "_nopart")
    a(f"s_cmp_eq_u32 s{S_E}, 0x7fffffff")
    a(f"s_cbranch_scc1 {nopart}")
    a("s_nop 7")
    for f in range(8):
        contract_tile(a, f)
    pb_, pj_ = a.uid(name + "_ptb"), a.uid(name + "_ptj")
    a(f"s_cmp_lg_u32 s{S_PH}, 0")
    a(f"s_cbranch_scc1 {pb_}")
    for i in range(8):
        a(f"v_mov_b32 v{V_PT+i}, v{V_T+i}")
    a(f"s_mov_b32 s{S_PART}, 1")
    a(f"s_mul_i32 s{S_PNODE}, s{S_CUR}, {P_PITCH}")
    a(f"s_branch {pj_}")
    a.label(pb_)
    for i in range(8):
        a(f"v_mov_b32 v{V_PT+8+i}, v{V_T+i}")
    a(f"s_mov_b32 s{S_PARTB}, 1")
    a(f"s_mul_i32 s{S_PNODEB}, s{S_CUR}, {P_PITCH}")
    a.label(pj_)
    a.label(nopart)
    a(f"s_cmp_lg_u32 s{S_PH}, 0")
    a(f"s_cbranch_scc1 {endmain}")
    a(f"s_mov_b32 s{S_PH}, 1")
    a(f"s_mov_b32 s{S_G32}, s{S_LOB}")
    a(f"s_mov_b32 s{S_HI}, s{S_HIB}")
    a(f"s_mov_b32 s{S_CUR}, s{S_CUR0B}")
    a(f"v_readlane_b32 s{S_E}, v{V_END}, s{S_CUR}")
    a(f"s_mul_i32 s{S_POFF}, s{S_CUR}, {P_PITCH}")
    a(f"s_add_u32 s{S_POFF}, s{S_POFF}, 1024")
    if prio == "swap":
        set_prio(a, name, False)
    stamp_at(a, stamps, "phaseB")
    radial_fetch(a, 1)
    zero_acc(a)
    a(f"s_branch {name}_v_resume")


def weight_transfers(a, name):
    a("; ---- output-GEMM weights to LDS (swizzled 32-byte pieces), radial weights to registers")
    a("v_and_b32 v8, 63, v0")
    a("v_lshrrev_b32 v9, 3, v8")
    a("v_bfe_u32 v10, v8, 1, 2")
    a("v_bfe_u32 v11, v8, 4, 1")
    a("v_xor_b32 v10, v10, v11")
    a("v_lshlrev_b32 v9, 7, v9")
    a("v_lshl_add_u32 v9, v10, 5, v9")
    a("v_and_b32 v10, 1, v8")
    a("v_lshl_add_u32 v9, v10, 4, v9")
    a("v_xor_b32 v10, 64, v9")
    a(f"s_lshl_b32 s{S_T+3}, s{S_WV}, 11")
    a(f"s_add_u32 s{S_T+4}, s{S_T+3}, {L_W}")
    a(f"s_mov_b32 m0, s{S_T+4}")
    a(f"s_add_u32 s{S_T+5}, s{S_T+3}, 1024")
    a(f"buffer_load_dwordx4 v9, s[{S_W0}:{S_W0+3}], s{S_T+3} offen lds")
    a(f"s_add_u32 s{S_T+4}, s{S_T+4}, 1024")
    a(f"s_mov_b32 m0, s{S_T+4}")
    a("s_nop 0")
    a(f"buffer_load_dwordx4 v10, s[{S_W0}:{S_W0+3}], s{S_T+5} offen lds")
    a(f"s_mul_i32 s{S_T+3}, s{S_WV}, 3072")
    for t in range(3):
        a(f"s_add_u32 s{S_T+5}, s{S_WV}, {t}")
        a(f"s_and_b32 s{S_T+5}, s{S_T+5}, 1")
        a(f"s_lshl_b32 s{S_T+5}, s{S_T+5}, 6")
        a(f"v_xor_b32 v11, s{S_T+5}, v9")
        a(f"s_add_u32 s{S_T+5}, s{S_T+3}, {t*1024}")
        a(f"s_add_u32 s{S_T+4}, s{S_T+5}, {L_W + 16384}")
        a(f"s_mov_b32 m0, s{S_T+4}")
        a("s_nop 0")
        a(f"buffer_load_dwordx4 v11, s[{S_W1}:{S_W1+3}], s{S_T+5} offen lds")
    a(f"s_mul_hi_u32 s{S_T+3}, s{S_WV}, 0x55555556")
    a(f"s_mul_i32 s{S_T+3}, s{S_T+3}, 3")
    a(f"s_sub_u32 s{S_T+3}, s{S_WV}, s{S_T+3}")
    a(f"s_lshl_b32 s{S_T+3}, s{S_T+3}, 10")
    a(f"s_add_u32 s{S_T+4}, s{S_T+3}, {L_RAD}")
    a(f"s_mov_b32 m0, s{S_T+4}")
    a("v_lshlrev_b32 v11, 4, v8")
    a(f"buffer_load_dwordx4 v11, s[{S_WR}:{S_WR+3}], s{S_T+3} offen lds")


def weight_frag_addr(a):
    t = V_X
    a(f"v_bfe_u32 v{t}, v0, 4, 2")
    a(f"v_bfe_u32 v{t+1}, v0, 2, 2")
    a(f"v_and_b32 v{t+2}, 3, v0")
    a(f"v_lshrrev_b32 v{t+4}, 1, v{t+1}")
    a(f"v_and_b32 v{t+5}, 1, v{t}")
    a(f"v_lshl_add_u32 v{t+4}, v{t+5}, 1, v{t+4}")
    a(f"s_and_b32 s{S_T}, s{S_WV}, 1")
    a(f"s_lshl_b32 s{S_T}, s{S_T}, 1")
    a(f"v_lshrrev_b32 v{t+5}, 1, v{t+2}")
    a(f"v_add_u32 v{t+5}, s{S_T}, v{t+5}")
    a(f"v_xor_b32 v{t+4}, v{t+5}, v{t+4}")
    a(f"v_lshlrev_b32 v{t+3}, 3, v{t}")
    a(f"v_add_u32 v{t+3}, v{t+3}, v{t+1}")
    a(f"v_lshlrev_b32 v{t+3}, 7, v{t+3}")
    a(f"v_lshl_add_u32 v{t+3}, v{t+4}, 5, v{t+3}")
    a(f"v_and_b32 v{t+5}, 1, v{t+2}")
    a(f"v_lshl_add_u32 v{t+3}, v{t+5}, 4, v{t+3}")
    a(f"v_add_u32 v{V_WA}, {L_W}, v{t+3}")


def weight_frags(a, name):
    nf2 = name + "_nf2"
    a(f"s_cmp_lg_u32 s{S_MODE}, 0")
    a(f"s_cbranch_scc1 {nf2}")
    a(f"s_cmp_lt_u32 s{S_WV}, 2")
    for bi in range(3):
        a(f"s_mov_b32 s{S_T+1}, {OG_BLOCKS[1][bi]}")
        a(f"s_cselect_b32 s{S_T+1}, {OG_BLOCKS[0][bi]}, s{S_T+1}")
        a(f"v_add_u32 v{V_TMP}, s{S_T+1}, v{V_WA}")
        for ks in range(2):
            for hf in range(2):
                r = V_WF + 16 * bi + 8 * ks + 4 * hf
                for rd in range(2):
                    a(f"ds_read_b64_tr_b16 v[{r+2*rd}:{r+2*rd+1}], v{V_TMP} offset:{rd*512 + ks*4096 + hf*8}")
    a(f"v_mov_b32 v{V_TMP}, {L_WCNT}")
    a(f"v_mov_b32 v{V_WA}, 1")
    a("s_mov_b64 exec, 1")
    a(f"ds_add_u32 v{V_TMP}, v{V_WA}")
    a("s_mov_b64 exec, -1")
    a.label(nf2)


def weight_frags_wait(a, name):
    done_, spin = name + "_wok", name + "_wspin"
    a(f"s_cmp_lg_u32 s{S_MODE}, 0")
    a(f"s_cbranch_scc1 {done_}")
    a(f"v_mov_b32 v{V_TMP}, {L_WCNT}")
    a.label(spin)
    a(f"ds_read_b32 v{V_WA}, v{V_TMP}")
    a("s_waitcnt lgkmcnt(0)")
    a(f"v_readfirstlane_b32 s{S_T}, v{V_WA}")
    a("s_nop 3")
    a(f"s_cmp_lt_u32 s{S_T}, 8")
    a(f"s_cbranch_scc1 {spin}")
    a.label(done_)


def gen_k2(a, name, stamps=False, dump=None, xflag="", pfa=False, pfb=False, stflag="", xcdmap=True, pfr=0, abl=(), prio=None, rflag='', pf2=0, pf3=None, pk=False, atr=False, onevisit=False):
    global PF3, PK, ATR, ONEVISIT
    ONEVISIT = onevisit
    PF3 = pf3
    PK = pk
    ATR = atr
    global ABL
    ABL = set(abl)
    a("; =====================================================================================")
    a("; =====================================================================================")
    kernel_header(a, name)
    done = name + "_done"
    a(f"s_cmp_ge_u32 s2, {NBK}")
    a(f"s_cbranch_scc1 {done}")
    if stamps:
        a("s_memrealtime s[98:99]")
    a("s_load_dwordx2 s[4:5], s[0:1], 0")
    a("s_load_dwordx4 s[8:11], s[0:1], 40")
    a("s_load_dwordx2 s[12:13], s[0:1], 56")
    a("s_load_dwordx2 s[14:15], s[0:1], 72")
    a("s_load_dwordx2 s[6:7], s[0:1], 88")
    a(f"v_lshrrev_b32 v1, 6, v0")
    if xcdmap:
        a(f"s_and_b32 s{S_BK}, s2, 7")
        a(f"s_lshl_b32 s{S_BK}, s{S_BK}, 5")
        a(f"s_lshr_b32 s{S_T}, s2, 3")
        a(f"s_or_b32 s{S_BK}, s{S_BK}, s{S_T}")
    else:
        a(f"s_mov_b32 s{S_BK}, s2")
    a(f"v_readfirstlane_b32 s{S_WV}, v1")
    a("; ---- descriptors")
    a("s_waitcnt lgkmcnt(0)")
    srd(a, S_WS, 6, WS_SCR_END)
    a(f"s_lshl_b32 s{S_T}, s{S_WV}, 15")
    a(f"s_lshl_b32 s{S_T+1}, s{S_BK}, 2")
    a(f"s_add_u32 s{S_T}, s{S_T}, s{S_T+1}")
    a(f"s_add_u32 s{S_T}, s{S_T}, {WS_TAB}")
    a("v_and_b32 v2, 31, v0")
    a("v_lshlrev_b32 v2, 10, v2")
    a(f"buffer_load_dword v{V_SEG}, v2, s[{S_WS}:{S_WS+3}], s{S_T} offen")
    a(f"s_lshl_b32 s{S_T}, s{S_WV}, 18")
    a(f"s_lshl_b32 s{S_T+1}, s{S_BK}, 5")
    a(f"s_add_u32 s{S_T}, s{S_T}, s{S_T+1}")
    a(f"s_add_u32 s{S_T}, s{S_T}, {WS_L32}")
    a("v_lshlrev_b32 v2, 3, v2")
    a(f"buffer_load_dwordx4 v[{V_L32}:{V_L32+3}], v2, s[{S_WS}:{S_WS+3}], s{S_T} offen")
    a(f"buffer_load_dwordx4 v[{V_L32+4}:{V_L32+7}], v2, s[{S_WS}:{S_WS+3}], s{S_T} offen offset:16")
    a("v_lshrrev_b32 v1, 4, v0")
    a("v_bfe_u32 v2, v0, 2, 2")
    a("v_lshlrev_b32 v2, 2, v2")
    a("v_and_b32 v3, 1, v0")
    a("v_lshl_add_u32 v2, v3, 1, v2")
    a("v_bfe_u32 v3, v0, 1, 1")
    a("v_lshl_add_u32 v2, v3, 4, v2")
    a("v_mov_b32 v4, 0")
    a("v_mov_b32 v5, 0xffff")
    a("v_cmp_lt_u32 vcc, v2, v1")
    a("s_nop 1")
    a("v_cndmask_b32 v6, v4, v5, vcc")
    a("v_add_u32 v2, 1, v2")
    a("v_mov_b32 v5, 0xffff0000")
    a("v_cmp_lt_u32 vcc, v2, v1")
    a("s_nop 1")
    a("v_cndmask_b32 v7, v4, v5, vcc")
    a("v_or_b32 v6, v6, v7")
    a("v_lshlrev_b32 v8, 2, v0")
    a(f"v_add_u32 v9, {L_MASK}, v8")
    a("ds_write_b32 v9, v6")
    a("v_mov_b32 v5, -1")
    a("v_mov_b32 v6, 0x3f803f80")
    a("v_cmp_gt_u32 vcc, 80, v0")
    a("s_and_b64 exec, exec, vcc")
    a(f"ds_write_b32 v8, v6 offset:{L_ONES}")
    a(f"ds_write_b32 v8, v4 offset:{L_CNT}")
    a("v_cmp_gt_u32 vcc, 16, v0")
    a("s_and_b64 exec, exec, vcc")
    a(f"ds_write_b32 v9, v5 offset:2048")
    a("s_mov_b64 exec, -1")
    if pfr:
        a(f"s_lshr_b32 s{S_T}, s2, 3")
        a(f"s_lshl_b32 s{S_T}, s{S_T}, 3")
        a(f"s_add_u32 s{S_T}, s{S_T}, s{S_WV}")
        a(f"s_mul_i32 s{S_T}, s{S_T}, {CH*16}")
        a(f"s_and_b32 s{S_T+1}, s2, 7")
        a(f"s_mul_i32 s{S_T+1}, s{S_T+1}, 5000")
        a(f"s_add_u32 s{S_T}, s{S_T}, s{S_T+1}")
        a(f"s_max_u32 s{S_T}, s{S_T}, {pfr}")
        a(f"s_sub_u32 s{S_T}, s{S_T}, {pfr}")
        a("v_and_b32 v2, 63, v0")
        a("v_lshlrev_b32 v2, 7, v2")
        a(f"v_mov_b32 v3, 0x7fffff00")
        a(f"v_cmp_gt_u32 vcc, {5000 + 2*pfr + 128}, v2")
        a("s_nop 1")
        a("v_cndmask_b32 v2, v3, v2, vcc")
        a(f"buffer_load_dword v{V_X+10}, v2, s[{S_WS}:{S_WS+3}], s{S_T} offen")
    if 'l1' in ABL:
        srd(a, S_X, 4, N * 512)
    else:
        srd(a, S_X, 4, N, stride=512)
    srd(a, S_XP, 4, N * 512)
    srd(a, S_WR, 8, 2560)
    srd(a, S_W0, 10, 16384)
    srd(a, S_W1, 12, 24576)
    srd(a, S_OUT, 14, N * 512)
    if stamps:
        a(f"s_lshl_b32 s{S_ST+4}, s2, 3")
        a(f"s_add_u32 s{S_ST+4}, s{S_ST+4}, s{S_WV}")
        a(f"s_lshl_b32 s{S_ST+4}, s{S_ST+4}, 6")
        a(f"s_add_u32 s{S_ST+4}, s{S_ST+4}, {WS_STAMP}")
    a(f"s_mov_b32 s{S_SELLO}, 0x05040100")
    a(f"s_mov_b32 s{S_SELHI}, 0x07060302")
    a(f"v_and_b32 v{V_I}, 15, v0")
    a("v_bfe_u32 v1, v0, 4, 2")
    a("v_lshlrev_b32 v5, 8, v1")
    a("v_lshlrev_b32 v1, 5, v1")
    a(f"s_lshl_b32 s{S_T}, s{S_WV}, 10")
    a(f"s_add_u32 s{S_LBW}, s{S_T}, {L_LB}")
    a(f"v_add3_u32 v{V_LBA}, v5, v{V_I}, s{S_LBW}")
    a("v_and_b32 v6, 31, v0")
    a("v_lshlrev_b32 v6, 5, v6")
    a(f"v_add_u32 v6, s{S_LBW}, v6")
    a("s_waitcnt lgkmcnt(0)")
    a("s_barrier")
    a(f"s_mov_b32 s{S_MODE}, 0")
    a("s_waitcnt vmcnt(0)")
    stamp_at(a, stamps, 'tab')
    a(f"ds_write_b128 v6, v[{V_L32}:{V_L32+3}]")
    a(f"ds_write_b128 v6, v[{V_L32+4}:{V_L32+7}] offset:16")
    for it in range(8):
        a(f"v_add_u32 v{V_BP+it}, {4*it}, v1")
        a(f"ds_bpermute_b32 v{V_ENT+it}, v{V_BP+it}, v{V_SEG}")
    a("s_waitcnt lgkmcnt(0)")
    stamp_at(a, stamps, "ent")
    rnd = name + "_round"
    a.label(rnd)
    for it in range(8):
        e = V_ENT + it
        a(f"v_lshrrev_b32 v{V_X}, 20, v{e}")
        a(f"v_and_b32 v{e}, 0xfffff, v{e}")
        a(f"v_cmp_lt_u32 s[{S_VAL+2*it}:{S_VAL+2*it+1}], v{V_I}, v{V_X}")
        a(f"v_add_u32 v{e}, v{e}, v{V_I}")
        a(f"v_lshlrev_b32 v{V_RANK+it}, 4, v{e}")
    for it in range(8):
        a(f"s_mov_b64 exec, s[{S_VAL+2*it}:{S_VAL+2*it+1}]")
        a(f"buffer_load_dwordx4 v[{V_REC+4*it}:{V_REC+4*it+3}], v{V_RANK+it}, s[{S_WS}:{S_WS+3}], 0 offen {rflag}")
    a("s_mov_b64 exec, -1")
    noov = name + "_noov"
    a(f"s_mov_b32 s{S_T+2}, 0")
    a(f"s_mov_b32 s{S_FORCE}, 0")
    a(f"v_mov_b32 v{V_X+1}, 0")
    a(f"v_mov_b32 v{V_X+4}, s{S_LBW}")
    a(f"v_and_b32 v{V_X+2}, 63, v0")
    a(f"s_cmp_lg_u32 s{S_MODE}, 0")
    a(f"s_cbranch_scc1 {noov}")
    a(f"s_mov_b32 s{S_T+3}, {17 << 20}")
    a(f"v_cmp_le_u32 vcc, s{S_T+3}, v{V_SEG}")
    a(f"s_mov_b32 s{S_T+7}, {33 << 20}")
    a(f"s_mov_b32 s{S_T+4}, vcc_lo")
    a(f"v_cmp_le_u32 vcc, s{S_T+7}, v{V_SEG}")
    a("s_nop 1")
    a(f"s_cmp_eq_u32 vcc_lo, 0")
    a(f"s_cselect_b32 s{S_FORCE}, 0, 1")
    a(f"s_cselect_b32 s{S_T+4}, s{S_T+4}, 0")
    ovl = name + "_ovl"
    a.label(ovl)
    a(f"s_cmp_eq_u32 s{S_T+4}, 0")
    a(f"s_cbranch_scc1 {noov}")
    a(f"s_ff1_i32_b32 s{S_T+3}, s{S_T+4}")
    a(f"s_bitset0_b32 s{S_T+4}, s{S_T+3}")
    a(f"v_readlane_b32 s{S_T+5}, v{V_SEG}, s{S_T+3}")
    a(f"s_lshl_b32 s{S_T+3}, s{S_T+3}, 5")
    a(f"s_add_u32 s{S_T+3}, s{S_T+3}, s{S_LBW}")
    a(f"s_add_u32 s{S_T+3}, s{S_T+3}, 16")
    a(f"s_sub_u32 s{S_T+3}, s{S_T+3}, s{S_T+2}")
    a(f"s_lshr_b32 s{S_T+6}, s{S_T+5}, 20")
    a(f"s_sub_u32 s{S_T+6}, s{S_T+6}, 16")
    a(f"s_and_b32 s{S_T+5}, s{S_T+5}, 0xfffff")
    a(f"s_add_u32 s{S_T+5}, s{S_T+5}, 16")
    a(f"s_sub_u32 s{S_T+5}, s{S_T+5}, s{S_T+2}")
    a(f"v_subrev_u32 v{V_X+3}, s{S_T+2}, v{V_X+2}")
    a(f"v_cmp_gt_u32 vcc, s{S_T+6}, v{V_X+3}")
    a(f"v_add_u32 v{V_X+3}, s{S_T+5}, v{V_X+2}")
    a(f"v_add_u32 v{V_X+5}, s{S_T+3}, v{V_X+2}")
    a(f"s_add_u32 s{S_T+2}, s{S_T+2}, s{S_T+6}")
    a(f"v_cndmask_b32 v{V_X+1}, v{V_X+1}, v{V_X+3}, vcc")
    a(f"v_cndmask_b32 v{V_X+4}, v{V_X+4}, v{V_X+5}, vcc")
    a(f"s_branch {ovl}")
    a.label(noov)
    a(f"s_min_u32 s{S_T+3}, s{S_T+2}, 64")
    a(f"v_cmp_gt_u32 s[{S_VAL+16}:{S_VAL+17}], s{S_T+3}, v{V_X+2}")
    a(f"v_lshlrev_b32 v{V_RANK+8}, 4, v{V_X+1}")
    a("s_nop 3")
    a(f"s_mov_b64 exec, s[{S_VAL+16}:{S_VAL+17}]")
    a(f"buffer_load_dwordx4 v[{V_REC+32}:{V_REC+35}], v{V_RANK+8}, s[{S_WS}:{S_WS+3}], 0 offen {rflag}")
    a("s_mov_b64 exec, -1")
    stamp_at(a, stamps, "ldissued")
    lslow, ljoin = name + "_lslow", name + "_ljoin"
    a(f"s_cmp_lg_u32 s{S_MODE}, 0")
    a(f"s_cbranch_scc1 {lslow}")
    for it in range(8):
        a(f"ds_read_u8 v{V_LOC+it}, v{V_LBA} offset:{32*it}")
    a(f"ds_read_u8 v{V_LOC+8}, v{V_X+4}")
    a(f"s_cmp_gt_u32 s{S_T+2}, 64")
    a(f"s_cselect_b32 s{S_FORCE}, 1, s{S_FORCE}")
    a(f"s_cmp_eq_u32 s{S_FORCE}, 0")
    nofl = name + "_nofl"
    a(f"s_cbranch_scc1 {nofl}")
    a(f"v_mov_b32 v{V_X}, {L_FLAG}")
    a(f"v_mov_b32 v{V_X+1}, 1")
    a(f"ds_write_b32 v{V_X}, v{V_X+1}")
    a.label(nofl)
    a("s_waitcnt lgkmcnt(0)")
    a(f"s_branch {ljoin}")
    a.label(lslow)
    a(f"s_mov_b32 s{S_T+3}, {WS_LOC}")
    for it in range(8):
        a(f"s_mov_b64 exec, s[{S_VAL+2*it}:{S_VAL+2*it+1}]")
        a(f"buffer_load_ubyte v{V_LOC+it}, v{V_ENT+it}, s[{S_WS}:{S_WS+3}], s{S_T+3} offen")
    a("s_mov_b64 exec, -1")
    a("s_waitcnt vmcnt(0)")
    a.label(ljoin)
    a(f"v_mov_b32 v{V_X}, 1")
    for it in range(9):
        a(f"v_lshlrev_b32 v{V_LOC+it}, 2, v{V_LOC+it}")
    for it in range(9):
        a(f"s_mov_b64 exec, s[{S_VAL+2*it}:{S_VAL+2*it+1}]")
        a(f"ds_add_rtn_u32 v{V_RANK+it}, v{V_LOC+it}, v{V_X} offset:{L_CNT}")
    a("s_mov_b64 exec, -1")
    a("s_waitcnt lgkmcnt(0)")
    stamp_at(a, stamps, "ranked")
    a("s_barrier")
    stamp_at(a, stamps, "bar1")
    a("v_and_b32 v1, 63, v0")
    a("v_lshlrev_b32 v2, 2, v1")
    a(f"ds_read_b32 v3, v2 offset:{L_CNT}")
    a(f"v_mov_b32 v4, {L_FLAG}")
    a("ds_read_b32 v4, v4")
    a("s_waitcnt lgkmcnt(0)")
    a("v_mov_b32 v5, v3")
    wave_scan(a, 5)
    a("v_sub_u32 v7, v5, v3")
    a(f"v_readlane_b32 s{S_T+2}, v5, 63")
    a(f"v_readfirstlane_b32 s{S_T+3}, v4")
    a("v_cmp_gt_u32 vcc, 40, v1")
    a(f"v_mov_b32 v{V_END}, 0x7fffffff")
    a("s_nop 0")
    a(f"v_cndmask_b32 v{V_END}, v{V_END}, v5, vcc")
    a(f"s_add_u32 s{S_T+4}, s{S_T+2}, 31")
    a(f"s_lshr_b32 s{S_T+4}, s{S_T+4}, 5")
    a(f"s_max_u32 s{S_T+4}, s{S_T+4}, 1")
    slow = name + "_slow"
    fits = name + "_fits"
    a(f"s_cmp_lg_u32 s{S_MODE}, 0")
    a(f"s_cbranch_scc1 {fits}")
    a(f"s_cmp_gt_u32 s{S_T+4}, {CAP // 32}")
    a(f"s_cbranch_scc1 {slow}")
    a(f"s_cmp_lg_u32 s{S_T+3}, 0")
    a(f"s_cbranch_scc1 {slow}")
    a.label(fits)
    for it in range(9):
        a(f"ds_bpermute_b32 v{V_BP+it}, v{V_LOC+it}, v7")
    a(f"s_mov_b32 s{S_G}, s{S_T+4}")
    for it in range(9):
        a(f"s_waitcnt lgkmcnt({8-it})")
        a(f"v_add_u32 v{V_RANK+it}, v{V_RANK+it}, v{V_BP+it}")
        a(f"v_lshlrev_b32 v{V_RANK+it}, 4, v{V_RANK+it}")
    nowt = name + "_nowt"
    a(f"s_cmp_lg_u32 s{S_MODE}, 0")
    a(f"s_cbranch_scc1 {nowt}")
    weight_transfers(a, name)
    if pfa:
        prefetch_x(a, 0, V_PF, V_PF + 1)
    a.label(nowt)
    nlater = 6 + (2 if pfa else 0)
    for it in range(9):
        a(f"s_waitcnt vmcnt({8-it+nlater})")
        a(f"s_mov_b64 exec, s[{S_VAL+2*it}:{S_VAL+2*it+1}]")
        a(f"ds_write_b128 v{V_RANK+it}, v[{V_REC+4*it}:{V_REC+4*it+3}] offset:{L_RAW}")
    a("s_mov_b64 exec, -1")
    if pf2:
        wl = name + "_pf2"
        a(f"s_cmp_lg_u32 s{S_MODE}, 0")
        a(f"s_cbranch_scc1 {wl}")
        a(f"s_lshr_b32 s{S_T}, s2, 3")
        a(f"s_mul_i32 s{S_T}, s{S_T}, {313*512}")
        a(f"s_mul_i32 s{S_T+1}, s{S_WV}, {39*512}")
        a(f"s_add_u32 s{S_T}, s{S_T}, s{S_T+1}")
        a("v_and_b32 v8, 63, v0")
        a("v_lshrrev_b32 v9, 1, v8")
        a("v_lshlrev_b32 v9, 9, v9")
        a("v_and_b32 v10, 1, v8")
        a("v_lshl_add_u32 v9, v10, 7, v9")
        a(f"v_cmp_gt_u32 vcc, {pf2}, v8")
        a("s_and_b64 exec, exec, vcc")
        a(f"buffer_load_dword v{V_PF}, v9, s[{S_XP}:{S_XP+3}], s{S_T} offen")
        a("s_mov_b64 exec, -1")
        a.label(wl)
    stamp_at(a, stamps, 'records')
    a(f"s_sub_u32 s{S_RHOB}, 7, s{S_WV}")
    a(f"s_cmp_ge_u32 s{S_G}, 8")
    a(f"s_cselect_b32 s{S_RHOB}, s{S_RHOB}, s{S_WV}")
    for rho, lo, hi, ng in ((S_WV, S_LO, S_HI, S_NG), (S_RHOB, S_LOB, S_HIB, S_NGB)):
        a(f"s_mul_i32 s{lo}, s{rho}, s{S_G}")
        a(f"s_add_u32 s{hi}, s{lo}, s{S_G}")
        a(f"s_lshr_b32 s{lo}, s{lo}, 3")
        a(f"s_lshr_b32 s{hi}, s{hi}, 3")
        a(f"s_sub_u32 s{ng}, s{hi}, s{lo}")
        a(f"s_lshl_b32 s{lo}, s{lo}, 5")
        a(f"s_lshl_b32 s{hi}, s{hi}, 5")
    a(f"s_lshl_b32 s{S_T}, s{S_G}, 5")
    a(f"s_sub_u32 s{S_T}, s{S_T}, s{S_T+2}")
    a(f"v_add_u32 v2, s{S_T+2}, v1")
    a("v_lshlrev_b32 v2, 4, v2")
    a(f"v_mov_b32 v{V_X}, 0")
    a(f"v_mov_b32 v{V_X+1}, 0")
    a(f"v_mov_b32 v{V_X+2}, 0")
    a(f"v_mov_b32 v{V_X+3}, 0xffff0000")
    a(f"v_cmp_gt_u32 vcc, s{S_T}, v1")
    a("s_and_b64 exec, exec, vcc")
    a(f"ds_write_b128 v2, v[{V_X}:{V_X+3}] offset:{L_RAW}")
    a("s_mov_b64 exec, -1")
    a("v_bfe_u32 v8, v0, 4, 2")
    a(f"v_lshlrev_b32 v9, 6, v8")
    a(f"s_lshl_b32 s{S_T}, s{S_LO}, 4")
    a(f"s_add_u32 s{S_T}, s{S_T}, {L_RAW}")
    a(f"v_add_u32 v9, s{S_T}, v9")
    a(f"v_add_u32 v{V_SADDR}, 14, v9")
    if ATR:
        a("v_bfe_u32 v10, v0, 2, 2")
        a(f"v_lshl_add_u32 v{V_AADDR}, v10, 4, v9")
    else:
        a("v_and_b32 v10, 3, v0")
        a(f"v_lshl_add_u32 v{V_AADDR}, v10, 1, v9")
    a("v_bfe_u32 v10, v0, 2, 2")
    a("v_lshl_add_u32 v11, v10, 1, v9")
    a(f"v_add_u32 v11, 6, v11")
    a("v_cmp_eq_u32 vcc, 0, v10")
    a(f"v_mov_b32 v12, {L_ONES}")
    a(f"v_mov_b32 v13, -1")
    a(f"v_mov_b32 v14, 0")
    a(f"v_cndmask_b32 v{V_YADDR}, v11, v12, vcc")
    a(f"v_cndmask_b32 v{V_YMASK}, v13, v14, vcc")
    a(f"v_lshlrev_b32 v{V_MBASE}, 4, v8")
    a(f"v_add_u32 v{V_MBASE}, {L_MASK}, v{V_MBASE}")
    a("v_and_b32 v10, 15, v0")
    a("v_lshlrev_b32 v11, 7, v8")
    a("v_lshrrev_b32 v12, 3, v10")
    a("v_lshl_add_u32 v11, v12, 9, v11")
    a("v_and_b32 v12, 7, v10")
    a("v_lshl_add_u32 v11, v12, 4, v11")
    a(f"v_add_u32 v{V_PL}, {L_P}, v11")
    a("v_lshlrev_b32 v10, 4, v10")
    for j in range(8):
        a(f"v_mov_b32 v{V_IDX+2*j+1}, v10")
    a(f"s_mov_b32 s{S_PART}, 0")
    a(f"s_mov_b32 s{S_PARTB}, 0")
    weight_frag_addr(a)
    a(f"s_waitcnt vmcnt({2 if pfa else 1 if pf2 else 0}) lgkmcnt(0)")
    a("s_barrier")
    stamp_at(a, stamps, 'sorted')
    endmain = name + "_endmain"
    hasg = name + "_hasg"
    a(f"s_cmp_lg_u32 s{S_NG}, 0")
    a(f"s_cbranch_scc1 {hasg}")
    weight_frags(a, name + "_e")
    range_nodes(a)
    a(f"s_branch {endmain}")
    a.label(hasg)
    main_loop(a, name, xflag, endmain, prio, stamps)
    a.label(endmain)
    if prio:
        a("s_setprio 0")
    stamp_at(a, stamps, 'mainend')
    a("s_waitcnt lgkmcnt(0)")
    a(f"v_add_u32 v14, s{S_PNODE}, v{V_PL}")
    a(f"v_add_u32 v15, s{S_PNODEB}, v{V_PL}")
    a("v_bfe_u32 v1, v0, 4, 2")
    a("v_and_b32 v2, 15, v0")
    a(f"s_lshr_b32 s{S_OG}, s{S_WV}, 1")
    a(f"s_and_b32 s{S_TP}, s{S_WV}, 1")
    a(f"s_movk_i32 s{S_T}, {P_PITCH}")
    a(f"v_mul_u32_u24 v12, s{S_T}, v2")
    a("v_lshl_add_u32 v12, v1, 4, v12")
    a(f"v_add_u32 v12, {L_P}, v12")
    allsl = 0
    for og in range(4):
        for si in range(4):
            allsl |= OG_SLICES[og][si] << (16 * og + 4 * si)
    a(f"s_mov_b32 s88, {allsl & 0xffffffff}")
    a(f"s_mov_b32 s89, {allsl >> 32}")
    a(f"s_lshl_b32 s90, s{S_OG}, 4")
    a(f"s_lshr_b64 s[88:89], s[88:89], s90")
    for si in range(4):
        a(f"s_bfe_u32 s90, s88, {(4*si) | (4 << 16)}")
        a(f"s_lshl_b32 s90, s90, 7")
        a(f"v_add_u32 v{8+si}, s90, v12")
        a(f"v_add_u32 v{16+si}, {2*16*P_PITCH}, v{8+si}")
    a(f"s_mul_i32 s{S_SCR}, s{S_BK}, {K2_THREADS*96}")
    a(f"s_add_u32 s{S_SCR}, s{S_SCR}, {WS_SCR}")
    a("v_mul_u32_u24 v13, 96, v0")
    a(f"s_movk_i32 s{S_T}, {G_PITCH}")
    a(f"v_mul_u32_u24 v20, s{S_T}, v2")
    a("v_lshl_add_u32 v20, v1, 5, v20")
    a(f"s_lshl_b32 s{S_T}, s{S_TP}, 7")
    a(f"s_add_u32 s{S_T}, s{S_T}, {L_GATE}")
    a(f"v_add_u32 v20, s{S_T}, v20")
    a(f"s_mul_i32 s88, s{S_BK}, 625")
    a("s_add_u32 s89, s88, 15")
    a("s_lshr_b32 s89, s89, 4")
    a("s_add_u32 s88, s88, 640")
    a("s_lshr_b32 s88, s88, 4")
    a("s_sub_u32 s88, s88, s89")
    a(f"s_sub_u32 s{S_NV}, s88, 32")
    a("s_lshl_b32 s89, s89, 9")
    a(f"s_lshl_b32 s90, s{S_OG}, 7")
    a("s_add_u32 s89, s89, s90")
    a(f"s_lshl_b32 s90, s{S_TP}, 6")
    a(f"s_add_u32 s{S_OUTB}, s89, s90")
    a("v_lshlrev_b32 v21, 9, v2")
    a("v_lshl_add_u32 v21, v1, 4, v21")
    a(f"v_add_u32 v22, {16*512}, v21")
    a(f"v_add_u32 v23, {32*512}, v21")
    a(f"s_mov_b32 s{S_NL2E}, 0xbfb8aa3b")
    OA = V_ACC
    oz, oj = a.uid(name + "_oz"), a.uid(name + "_oj")
    a("s_nop 7")
    a(f"s_cmp_eq_u32 s{S_MODE}, 0")
    a(f"s_cbranch_scc1 {oz}")
    a(f"s_cmp_eq_u32 s{S_RND}, 0")
    a(f"s_cbranch_scc1 {oz}")
    for i in range(6):
        a(f"buffer_load_dwordx4 v[{OA+4*i}:{OA+4*i+3}], v13, s[{S_WS}:{S_WS+3}], s{S_SCR} offen offset:{16*i} sc1")
    a("s_waitcnt vmcnt(0)")
    a(f"s_branch {oj}")
    a.label(oz)
    for i in range(24):
        a(f"v_mov_b32 v{OA+i}, 0")
    a.label(oj)
    a("s_mov_b32 s90, 0")
    a("s_waitcnt vmcnt(0) lgkmcnt(0)")
    a("s_barrier")
    stamp_at(a, stamps, "barA")
    rl, rd_ = a.uid(name + "_rl"), a.uid(name + "_rd")
    a.label(rl)
    parts = ((0, S_PART, S_RA, 14, 88), (1, S_PARTB, S_RB, 15, 89))
    for ph, part, rr, va, flag in parts:
        sk = a.uid(name + "_rs")
        a(f"s_cmp_eq_u32 s{rr}, s90")
        a(f"s_cselect_b32 s{flag}, s{part}, 0")
        a(f"s_cmp_eq_u32 s{flag}, 0")
        a(f"s_cbranch_scc1 {sk}")
        b = V_RAW + 4 * ph
        a(f"ds_read_b128 v[{b}:{b+3}], v{va} offset:{ph*1024}")
        a.label(sk)
    a("s_waitcnt lgkmcnt(0)")
    for ph, part, rr, va, flag in parts:
        sk = a.uid(name + "_rs")
        a(f"s_cmp_eq_u32 s{flag}, 0")
        a(f"s_cbranch_scc1 {sk}")
        b = V_RAW + 4 * ph
        for i in range(4):
            a(f"v_lshlrev_b32 v{V_T+2*i}, 16, v{b+i}")
            a(f"v_and_b32 v{V_T+2*i+1}, 0xffff0000, v{b+i}")
        for i in range(8):
            a(f"v_add_f32 v{V_T+i}, v{V_T+i}, v{V_PT+8*ph+i}")
        for i in range(4):
            a(f"v_cvt_pk_bf16_f32 v{b+i}, v{V_T+2*i}, v{V_T+2*i+1}")
        a(f"ds_write_b128 v{va}, v[{b}:{b+3}] offset:{ph*1024}")
        a.label(sk)
    a(f"s_cmp_eq_u32 s{S_RUN}, 0")
    a(f"s_cbranch_scc1 {rd_}")
    a(f"s_lshl_b32 s91, s{S_RUN}, 1")
    a(f"s_and_b32 s{S_RUN}, s{S_RUN}, s91")
    a("s_add_u32 s90, s90, 1")
    a("s_waitcnt lgkmcnt(0)")
    a("s_barrier")
    a(f"s_branch {rl}")
    a.label(rd_)
    a("s_waitcnt lgkmcnt(0)")
    a("s_barrier")
    stamp_at(a, stamps, 'pdone')

    def breads(mt, b):
        for si in range(4):
            for ks in range(2):
                va, off = (8 + si, mt * 16 * P_PITCH) if mt < 2 else (16 + si, 0)
                a(f"ds_read_b128 v[{b+8*si+4*ks}:{b+8*si+4*ks+3}], v{va} offset:{off + ks*64}")

    def sigmoid_ops(mt):
        g, o = V_W + 8 * mt, OA + 8 * mt
        ops = [f"v_mul_f32 v{g+r}, s{S_NL2E}, v{o+r}" for r in range(8)]
        ops += [f"v_exp_f32 v{g+r}, v{g+r}" for r in range(8)]
        ops += [f"v_add_f32 v{g+r}, 1.0, v{g+r}" for r in range(8)]
        ops += [f"v_rcp_f32 v{g+r}, v{g+r}" for r in range(8)]
        return ops

    def gate_write(mt):
        g = V_W + 8 * mt
        a("s_nop 0")
        for hf in range(2):
            a(f"ds_write_b128 v20, v[{g+4*hf}:{g+4*hf+3}] offset:{mt*16*G_PITCH + hf*16}")

    def mfmas(mt, b, fill=(), newer=None):
        fill = list(fill)
        k = 0
        for si in range(4):
            for ks in range(2):
                if newer is not None:
                    a(f"s_waitcnt lgkmcnt({newer + 7 - (2 * si + ks)})")
                wf = V_WF + 16 * SI_BLOCK[si] + 8 * ks
                for hf in range(2):
                    o = OA + 8 * mt + 4 * hf
                    a(f"v_mfma_f32_16x16x32_bf16 v[{o}:{o+3}], v[{wf+4*hf}:{wf+4*hf+3}], v[{b+8*si+4*ks}:{b+8*si+4*ks+3}], v[{o}:{o+3}]")
                    if fill and k == 0:
                        a("s_nop 6")
                    for _ in range(2):
                        if fill:
                            a(fill.pop(0))
                    k += 1
        assert not fill

    def gemm(gate):
        breads(0, V_RAW)
        breads(1, V_FRAG)
        mfmas(0, V_RAW, newer=8)
        breads(2, V_RAW)
        a("s_waitcnt lgkmcnt(8)")
        mfmas(1, V_FRAG, sigmoid_ops(0) if gate else ())
        if gate:
            gate_write(0)
        a(f"s_waitcnt lgkmcnt({2 if gate else 0})")
        mfmas(2, V_RAW, sigmoid_ops(1) if gate else ())
        if gate:
            gate_write(1)
            a("s_nop 7")
            for op in sigmoid_ops(2):
                a(op)
            gate_write(2)

    fin = name + "_fin"
    nextround = name + "_nextround"
    plain, og0done = a.uid(name + "_plain"), a.uid(name + "_og0done")
    a(f"s_cmp_lg_u32 s{S_OG}, 0")
    a(f"s_cbranch_scc1 {plain}")
    a(f"s_cmp_eq_u32 s{S_MODE}, 0")
    a(f"s_cbranch_scc1 {plain}_g")
    a(f"s_cmp_lt_u32 s{S_RND}, {G1-1}")
    a(f"s_cbranch_scc1 {plain}")
    a.label(plain + "_g")
    gemm(True)
    stamp_at(a, stamps, "gemm")
    a("s_waitcnt lgkmcnt(0)")
    a("s_barrier")
    a(f"s_branch {og0done}")
    a.label(plain)
    gemm(False)
    stamp_at(a, stamps, "gemm")
    a(f"s_cmp_eq_u32 s{S_MODE}, 0")
    a(f"s_cbranch_scc1 {fin}")
    a(f"s_add_u32 s{S_RND}, s{S_RND}, 1")
    a(f"s_cmp_ge_u32 s{S_RND}, {G1}")
    a(f"s_cbranch_scc1 {fin}")
    a("s_nop 7")
    for i in range(6):
        a(f"buffer_store_dwordx4 v[{OA+4*i}:{OA+4*i+3}], v13, s[{S_WS}:{S_WS+3}], s{S_SCR} offen offset:{16*i} sc1")
    a(f"s_branch {nextround}")
    a.label(slow)
    weight_transfers(a, name)
    a("s_waitcnt vmcnt(0) lgkmcnt(0)")
    a("s_barrier")
    weight_frag_addr(a)
    weight_frags(a, name + "_s")
    a("s_waitcnt lgkmcnt(0)")
    a("s_barrier")
    a(f"s_mov_b32 s{S_MODE}, 1")
    a(f"s_mov_b32 s{S_RND}, 0")
    a.label(nextround)
    a("s_waitcnt vmcnt(0) lgkmcnt(0)")
    a("s_barrier")
    a("v_lshlrev_b32 v1, 2, v0")
    a("v_mov_b32 v2, 0")
    a("v_cmp_gt_u32 vcc, 80, v0")
    a("s_and_b64 exec, exec, vcc")
    a(f"ds_write_b32 v1, v2 offset:{L_CNT}")
    a("s_mov_b64 exec, -1")
    a(f"s_lshl_b32 s{S_T}, s{S_RND}, 10")
    a(f"s_lshl_b32 s{S_T+1}, s{S_BK}, 2")
    a(f"s_add_u32 s{S_T}, s{S_T}, s{S_T+1}")
    a(f"s_add_u32 s{S_T}, s{S_T}, {WS_TAB}")
    a("v_mov_b32 v1, 0")
    a(f"buffer_load_dword v1, v1, s[{S_WS}:{S_WS+3}], s{S_T} offen")
    a("s_waitcnt vmcnt(0) lgkmcnt(0)")
    a("v_lshrrev_b32 v2, 20, v1")
    a("v_and_b32 v1, 0xfffff, v1")
    for it in range(8):
        a(f"v_subrev_u32 v3, {it*K2_THREADS}, v2")
        a(f"v_max_i32 v3, 0, v3")
        a(f"v_min_u32 v3, {K2_THREADS}, v3")
        a(f"v_add_u32 v4, {it*K2_THREADS}, v1")
        a(f"v_lshl_or_b32 v{V_ENT+it}, v3, 20, v4")
    a(f"v_mov_b32 v{V_I}, v0")
    a("s_barrier")
    a(f"s_branch {rnd}")
    a.label(fin)
    a("s_barrier")
    for mt in range(3):
        for hf in range(2):
            g = V_RAW + 4 * (2 * mt + hf)
            a(f"ds_read_b128 v[{g}:{g+3}], v20 offset:{mt*16*G_PITCH + hf*16}")
    for mt in range(3):
        for hf in range(2):
            o = OA + 8 * mt + 4 * hf
            g = V_RAW + 4 * (2 * mt + hf)
            a(f"s_waitcnt lgkmcnt({5 - (2*mt+hf)})")
            for r in range(4):
                a(f"v_mul_f32 v{o+r}, v{o+r}, v{g+r}")
    a.label(og0done)
    stamp_at(a, stamps, "gate")
    a(f"v_cmp_gt_u32 vcc, s{S_NV}, v2")
    for mt in range(3):
        t = V_FRAG + 4 * mt
        for hf in range(2):
            o = OA + 8 * mt + 4 * hf
            a(f"v_cvt_pk_bf16_f32 v{t+2*hf}, v{o}, v{o+1}")
            a(f"v_cvt_pk_bf16_f32 v{t+2*hf+1}, v{o+2}, v{o+3}")
        if mt == 2:
            a("s_and_b64 exec, exec, vcc")
        a(f"buffer_store_dwordx4 v[{t}:{t+3}], v{21+mt}, s[{S_OUT}:{S_OUT+3}], s{S_OUTB} offen {stflag}")
    if stamps:
        a("s_mov_b64 exec, -1")
        stamp_at(a, stamps, "issued")
        a("s_waitcnt vmcnt(0)")
        stamp_at(a, stamps, "done")
        a("s_waitcnt lgkmcnt(0)")
        a("s_mov_b64 exec, 1")
        a("v_mov_b32 v1, 0")
        a("s_mov_b32 s4, s98")
        for k in range(8):
            a(f"v_mov_b32 v{8+k}, s{4+k}")
        a(f"v_mov_b32 v16, s{S_NG}")
        a(f"buffer_store_dword v16, v1, s[{S_WS}:{S_WS+3}], s{S_ST+4} offen offset:32")
        a(f"buffer_store_dwordx4 v[8:11], v1, s[{S_WS}:{S_WS+3}], s{S_ST+4} offen")
        a(f"buffer_store_dwordx4 v[12:15], v1, s[{S_WS}:{S_WS+3}], s{S_ST+4} offen offset:16")
    a.label(done)
    a("s_endpgm")
    kernel_desc(a, name, 256, sgpr=102)
    return (name, 256, 102, K2_THREADS)


if __name__ == "__main__":
    from gen_k1 import gen_k1
    a = Asm()
    a('.amdgcn_target "amdgcn-amd-amdhsa--gfx950"')
    ks = [gen_k1(a, "part_kernel", stflag="sc1", ldflag="nt"),
          gen_k2(a, "main_kernel", prio=(4,), stflag="sc1", pf2=32), gen_k2(a, "mains_kernel", stamps=True, prio="swap", stflag="nt", pf2=32),
          gen_k2(a, "mainq_kernel", stamps=True, prio=(4,), stflag="sc1", pf2=32),
          gen_k2(a, "mainepi_kernel", stamps="epi", prio=(4,), stflag="sc1", pf2=32),
          ]
    metadata(a, ks, 96)
    open("k12.s", "w").write(a.text())
```

```python
from asmlib import *

E = 640000
N = 10000
G1 = 256
CH = 2500
NBK = 256
WS_REC = 0
WS_LOC = E * 16
WS_TAB = WS_LOC + E
WS_L32 = WS_TAB + NBK * G1 * 4
WS_END = WS_L32 + NBK * G1 * 32
WS_STAMP = 14 * 1024 * 1024
K1_THREADS = 640
K1_LDS = 6144
L_HIST, L_BASE, L_LOC, L_REC = 0, 2560, 3584, 6144
L_L32 = L_REC + 4 * K1_THREADS * 16
K1_LDS_ST = L_L32 + 8192


def srd(a, base, ptr, size, stride=0):
    a(f"s_mov_b32 s{base}, s{ptr}")
    a(f"s_and_b32 s{base+1}, s{ptr+1}, 0xffff")
    if stride:
        a(f"s_or_b32 s{base+1}, s{base+1}, {stride << 16}")
    a(f"s_mov_b32 s{base+2}, {size}")
    a(f"s_mov_b32 s{base+3}, 0x20000")


def wave_scan(a, v):
    for sh in (1, 2, 4, 8):
        a("s_nop 1")
        a(f"v_add_u32_dpp v{v}, v{v}, v{v} row_shr:{sh} row_mask:0xf bank_mask:0xf bound_ctrl:0")
    a("s_nop 1")
    a(f"v_add_u32_dpp v{v}, v{v}, v{v} row_bcast:15 row_mask:0xa bank_mask:0xf")
    a("s_nop 1")
    a(f"v_add_u32_dpp v{v}, v{v}, v{v} row_bcast:31 row_mask:0xc bank_mask:0xf")


def stamp(a, sreg):
    a(f"s_memrealtime s[{sreg}:{sreg+1}]")


def prefetch_x_share(a, name, lines):
    a("s_load_dwordx2 s[76:77], s[0:1], 0")
    a("s_mov_b64 s[54:55], exec")
    a("s_mov_b64 exec, -1")
    a("s_lshr_b32 s56, s2, 3")
    a(f"s_mul_i32 s56, s56, {313*512}")
    a("v_lshrrev_b32 v68, 1, v0")
    a("v_lshlrev_b32 v68, 9, v68")
    a("v_and_b32 v69, 1, v0")
    a("v_lshl_add_u32 v68, v69, 7, v68")
    a(f"s_movk_i32 s57, {lines}")
    a("v_cmp_gt_u32 s[58:59], s57, v0")
    a("s_waitcnt lgkmcnt(0)")
    srd(a, 76, 76, N * 512)
    a("s_mov_b64 exec, s[58:59]")
    lab = name + "_nopfxl"
    a(f"s_cbranch_execz {lab}")
    a("buffer_load_dword v77, v68, s[76:79], s56 offen")
    a.label(lab)
    a("s_mov_b64 exec, s[54:55]")


def gen_k1(a, name, stamps=False, staged=True, stflag='', dbg=False, ldflag='', pfx=False, touch=None, pfcode=None, pfself=False, pfxl=None, pfin=0, pfinflag=''):
    a("; =====================================================================================")
    a("; =====================================================================================")
    kernel_header(a, name)
    done = name + "_done"
    a(f"s_cmp_ge_u32 s2, {G1}")
    a(f"s_cbranch_scc1 {done}")
    if stamps or dbg:
        stamp(a, 60)
    if dbg:
        a("s_load_dwordx2 s[70:71], s[0:1], 80")
    a("s_load_dwordx4 s[4:7], s[0:1], 8")
    a("s_load_dwordx4 s[8:11], s[0:1], 24")
    a("s_load_dwordx2 s[12:13], s[0:1], 88")
    if pfself:
        a("s_getpc_b64 s[72:73]")
        a(f"{name}_pc0:")
        a("v_lshlrev_b32 v69, 6, v0")
        a(f"s_mov_b32 s57, {name}_done-{name}_pc0")
        a("v_mov_b32 v71, s73")
        a("v_cmp_gt_u32 s[58:59], s57, v69")
        a("v_add_co_u32 v70, s[52:53], s72, v69")
        a("s_nop 1")
        a("v_addc_co_u32 v71, s[52:53], 0, v71, s[52:53]")
        a("s_mov_b64 exec, s[58:59]")
        a(f"s_cbranch_execz {name}_noself")
        a("global_load_dword v72, v[70:71], off")
        a.label(name + "_noself")
        a("s_mov_b64 exec, -1")
    a("v_lshlrev_b32 v1, 2, v0")
    a("v_mov_b32 v2, 0")
    a("ds_write_b32 v1, v2")
    a("v_lshlrev_b32 v3, 4, v0")
    a("v_lshlrev_b32 v4, 5, v0")
    a("v_mul_u32_u24 v5, 24, v0")
    a(f"s_mul_i32 s14, s2, {CH*4}")
    a(f"s_mul_i32 s15, s2, {CH*8}")
    a(f"s_mul_i32 s16, s2, {CH*6}")
    a(f"s_mul_i32 s17, s2, {CH}")
    a(f"s_mul_i32 s18, s2, {CH*16}")
    a(f"v_cmp_gt_u32 vcc, {CH//4}, v0")
    a("s_waitcnt lgkmcnt(0)")
    srd(a, 20, 10, E * 4)
    srd(a, 24, 8, E * 4)
    srd(a, 28, 6, E * 8)
    srd(a, 32, 4, E * 6)
    srd(a, 36, 12, WS_STAMP + 65536 if (stamps or dbg) else WS_END)
    a("s_and_saveexec_b64 s[40:41], vcc")
    a(f"buffer_load_dwordx4 v[8:11], v3, s[20:23], s14 offen {ldflag}")
    a(f"buffer_load_dwordx4 v[12:15], v3, s[24:27], s14 offen {ldflag}")
    a(f"buffer_load_dwordx4 v[16:19], v4, s[28:31], s15 offen {ldflag}")
    a(f"buffer_load_dwordx4 v[20:23], v4, s[28:31], s15 offen offset:16 {ldflag}")
    a(f"buffer_load_dwordx4 v[24:27], v5, s[32:35], s16 offen {ldflag}")
    a(f"buffer_load_dwordx2 v[28:29], v5, s[32:35], s16 offen offset:16 {ldflag}")
    if pfin:
        lab = name + "_nopfin"
        a(f"s_cmp_ge_u32 s2, {G1 - pfin}")
        a(f"s_cbranch_scc1 {lab}")
        a("s_mov_b64 s[54:55], exec")
        a("s_mov_b64 exec, -1")
        for k, (lo, nl, base, per, dst) in enumerate(((0, 79, 20, CH*4, 78), (128, 79, 24, CH*4, 78), (256, 157, 28, CH*8, 79), (448, 118, 32, CH*6, 79))):
            l2 = f"{name}_pfin{k}"
            a(f"v_subrev_u32 v68, {lo}, v0")
            a(f"v_cmp_gt_u32 s[58:59], s43, v68") if False else None
            a(f"s_movk_i32 s57, {nl}")
            a("v_cmp_gt_u32 s[58:59], s57, v68")
            a("v_lshlrev_b32 v69, 7, v68")
            a(f"s_add_u32 s56, s2, {pfin}")
            a(f"s_mul_i32 s56, s56, {per}")
            a("s_mov_b64 exec, s[58:59]")
            a(f"s_cbranch_execz {l2}")
            a(f"buffer_load_dword v{dst}, v69, s[{base}:{base+3}], s56 offen {pfinflag}")
            a.label(l2)
            a("s_mov_b64 exec, -1")
        a("s_mov_b64 exec, s[54:55]")
        a.label(lab)
    if pfcode:
        label, endlabel = pfcode[0], pfcode[1]
        a("s_mov_b64 s[54:55], exec")
        a("s_mov_b64 exec, -1")
        a("s_lshr_b32 s56, s2, 3")
        a("v_and_b32 v68, 63, v0")
        a("s_getpc_b64 s[72:73]")
        a(f"{name}_pc:")
        a(f"s_add_u32 s72, s72, {label}-{name}_pc")
        a("s_addc_u32 s73, s73, 0")
        first = pfcode[3] if len(pfcode) > 3 else 0
        if first:
            a("v_lshlrev_b32 v69, 6, v0")
            a(f"s_mov_b32 s57, {endlabel}-{label}")
            a("v_cmp_gt_u32 s[58:59], s57, v69")
            a("s_nop 3")
            a(f"s_cmp_lt_u32 s2, {first}")
            a("s_cselect_b64 s[58:59], s[58:59], 0")
        else:
            a("s_lshl_b32 s57, s56, 3")
            a("v_add_u32 v69, s57, v68")
            a("v_lshlrev_b32 v69, 6, v69")
            a(f"s_mov_b32 s57, {endlabel}-{label}")
            a("v_cmp_gt_u32 s[58:59], s57, v69")
            a("v_cmp_gt_u32 s[52:53], 8, v0")
            a("s_and_b64 s[58:59], s[58:59], s[52:53]")
        a("v_mov_b32 v71, s73")
        a("v_add_co_u32 v70, s[52:53], s72, v69")
        a("s_nop 1")
        a("v_addc_co_u32 v71, s[52:53], 0, v71, s[52:53]")
        a("s_mov_b64 exec, s[58:59]")
        lab2 = name + "_nocode"
        a(f"s_cbranch_execz {lab2}")
        a("global_load_dword v73, v[70:71], off")
        a.label(lab2)
        a("s_mov_b64 exec, -1")
        if len(pfcode) > 2 and pfcode[2]:
            a("s_load_dwordx4 s[72:75], s[0:1], 40")
            a("s_load_dwordx2 s[76:77], s[0:1], 56")
            a("v_subrev_u32 v70, 64, v0")
            a("s_mul_i32 s57, s56, 6")
            a("v_add_u32 v70, s57, v70")
            a("v_lshlrev_b32 v70, 7, v70")
            a("v_subrev_u32 v71, 64, v0")
            a("v_cmp_gt_u32 s[58:59], 6, v71")
            a("s_waitcnt lgkmcnt(0)")
            a("s_mov_b32 s48, s74"); a("s_and_b32 s49, s75, 0xffff"); a("s_mov_b32 s50, 16384"); a("s_mov_b32 s51, 0x20000")
            srd(a, 76, 76, 24576)
            srd(a, 72, 72, 2560)
            a("s_mov_b64 exec, s[58:59]")
            lab3 = name + "_now"
            a(f"s_cbranch_execz {lab3}")
            a("buffer_load_dword v74, v70, s[48:51], 0 offen")
            a("buffer_load_dword v75, v70, s[76:79], 0 offen")
            a("buffer_load_dword v76, v70, s[72:75], 0 offen")
            a.label(lab3)
        a("s_mov_b64 exec, s[54:55]")
    if touch:
        stride, nwg = touch
        lab = name + "_notouch"
        a(f"s_cmp_ge_u32 s2, {nwg}")
        a(f"s_cbranch_scc1 {lab}")
        a("s_load_dwordx2 s[76:77], s[0:1], 0")
        a("s_load_dwordx2 s[72:73], s[0:1], 72")
        a("s_waitcnt lgkmcnt(0)")
        a("s_mov_b64 s[54:55], exec")
        a("s_mov_b64 exec, -1")
        a(f"v_mul_u32_u24 v68, {stride}, v0") if stride < (1 << 16) else (a(f"s_mov_b32 s56, {stride}"), a("v_mul_lo_u32 v68, s56, v0"))
        srd(a, 76, 76, N * 512)
        a("buffer_load_dword v69, v68, s[76:79], 0 offen")
        srd(a, 72, 72, N * 512)
        a("buffer_load_dword v70, v68, s[72:75], 0 offen")
        a("buffer_load_dword v71, v68, s[36:39], 0 offen")
        a("s_mov_b64 exec, s[54:55]")
        a.label(lab)
    if pfx:
        a("s_load_dwordx2 s[76:77], s[0:1], 0")
        a("s_waitcnt lgkmcnt(0)")
        srd(a, 76, 76, N * 512)
        a(f"s_mul_i32 s19, s2, {N*512//G1}")
        a("v_lshlrev_b32 v68, 7, v0")
        a(f"s_movk_i32 s52, {N*512//G1}")
        a("v_cmp_gt_u32 s[52:53], s52, v68")
        a("s_mov_b64 s[54:55], exec")
        a("s_and_b64 exec, exec, s[52:53]")
        lab = name + "_nopfx"
        a(f"s_cbranch_execz {lab}")
        a("buffer_load_dword v69, v68, s[76:79], s19 offen")
        a.label(lab)
        a("s_mov_b64 exec, s[54:55]")
    a("s_mov_b32 s19, 429497")
    a("s_movk_i32 s42, 625")
    a("s_movk_i32 s43, 205")
    a("v_mov_b32 v2, 1")
    a("s_barrier")
    a("s_waitcnt vmcnt(5)")
    if stamps or dbg:
        stamp(a, 62)
    for k in range(4):
        d = 8 + k
        a(f"v_mul_u32_u24 v{30+k}, s19, v{d}")
        a(f"v_lshrrev_b32 v{30+k}, 24, v{30+k}")
    for k in range(4):
        a(f"v_mad_u32_u24 v{42+k}, v{30+k}, s42, 15")
        a(f"v_lshrrev_b32 v{42+k}, 4, v{42+k}")
        a(f"v_sub_u32 v{42+k}, v{8+k}, v{42+k}")
        a(f"v_lshlrev_b32 v{30+k}, 2, v{30+k}")
        a(f"ds_add_rtn_u32 v{38+k}, v{30+k}, v2")
    for k in range(4):
        a(f"v_mov_b32 v{34+k}, v{42+k}")
    a("s_waitcnt lgkmcnt(0)")
    a("s_barrier")
    a("s_mov_b64 exec, -1")
    a("v_and_b32 v6, 63, v0")
    a("v_lshlrev_b32 v7, 4, v6")
    a(f"ds_read_b128 v[44:47], v7 offset:{L_HIST}")
    a("s_waitcnt lgkmcnt(0)")
    a("v_add_u32 v48, v44, v45")
    a("v_add_u32 v49, v48, v46")
    a("v_add_u32 v50, v49, v47")
    a("v_mov_b32 v51, v50")
    wave_scan(a, 51)
    a("v_sub_u32 v52, v51, v50")
    a("v_add_u32 v53, v52, v44")
    a("v_add_u32 v54, v52, v48")
    a("v_add_u32 v55, v52, v49")
    a(f"ds_write_b128 v7, v[52:55] offset:{L_BASE}")
    for k in range(4):
        a(f"v_add_u32 v{60+k}, s17, v{52+k}")
        a(f"v_lshl_or_b32 v{60+k}, v{44+k}, 20, v{60+k}")
    a("s_waitcnt lgkmcnt(0)")
    a("s_mov_b64 exec, s[40:41]")
    a("s_and_b64 exec, exec, vcc")
    for k in range(4):
        a(f"ds_read_b32 v{44+k}, v{30+k} offset:{L_BASE}")
    a("s_waitcnt lgkmcnt(0)")
    for k in range(4):
        a(f"v_lshl_add_u32 v{48+k}, v{30+k}, 3, v{38+k}")
        a(f"v_cmp_gt_u32 s[{52+2*k}:{53+2*k}], 32, v{38+k}")
    for k in range(4):
        a(f"v_add_u32 v{38+k}, v{38+k}, v{44+k}")
        a(f"ds_write_b8 v{38+k}, v{34+k} offset:{L_LOC}")
    a("s_mov_b64 s[50:51], exec")
    for k in range(4):
        a(f"s_and_b64 exec, s[50:51], s[{52+2*k}:{53+2*k}]")
        a(f"ds_write_b8 v{48+k}, v{34+k} offset:{L_L32}")
    a("s_mov_b64 exec, s[50:51]")
    if stamps:
        stamp(a, 64)
    a("s_waitcnt vmcnt(0)")
    if stamps or dbg:
        stamp(a, 66)
    a("s_mov_b32 s44, 0x05040100")
    a("s_mov_b32 s45, 0x05040302")
    R = 24
    for k in range(4):
        r = 44 + 4 * k
        a(f"v_mov_b32 v{r}, v{16+2*k}")
        a(f"v_mov_b32 v{r+1}, v{17+2*k}")
    a(f"v_mov_b32 v46, v{R}")
    a(f"v_perm_b32 v47, v12, v{R+1}, s44")
    a(f"v_alignbit_b32 v50, v{R+2}, v{R+1}, 16")
    a(f"v_perm_b32 v51, v13, v{R+2}, s45")
    a(f"v_mov_b32 v54, v{R+3}")
    a(f"v_perm_b32 v55, v14, v{R+4}, s44")
    a(f"v_alignbit_b32 v58, v{R+5}, v{R+4}, 16")
    a(f"v_perm_b32 v59, v15, v{R+5}, s45")
    for k in range(4):
        a(f"v_lshlrev_b32 v{38+k}, 4, v{38+k}")
    if not staged:
        for k in range(4):
            r = 44 + 4 * k
            a(f"buffer_store_dwordx4 v[{r}:{r+3}], v{38+k}, s[36:39], s18 offen {stflag}")
    else:
        for k in range(4):
            r = 44 + 4 * k
            a(f"ds_write_b128 v{38+k}, v[{r}:{r+3}] offset:{L_REC}")
        a("s_waitcnt lgkmcnt(0)")
        if pfxl and pfxl[1] == "early":
            prefetch_x_share(a, name, pfxl[0])
        a("s_barrier")
        a(f"ds_read_b32 v7, v1 offset:{L_LOC}")
        a("s_mov_b64 s[50:51], exec")
        a("s_mov_b64 exec, -1")
        a(f"ds_read_b128 v[64:67], v3 offset:{L_L32}")
        for k in range(4):
            a(f"ds_read_b128 v[{44+4*k}:{47+4*k}], v3 offset:{L_REC + k*K1_THREADS*16}")
        a(f"v_add_u32 v38, {3*K1_THREADS*16}, v3")
        a(f"v_cmp_gt_u32 vcc, {CH*16}, v38")
        for k in range(3):
            a(f"v_add_u32 v{39+k}, {k*K1_THREADS*16}, v3")
        for k in range(3):
            a(f"s_waitcnt lgkmcnt({3-k})")
            a(f"buffer_store_dwordx4 v[{44+4*k}:{47+4*k}], v{39+k}, s[36:39], s18 offen {stflag}")
        a("s_waitcnt lgkmcnt(0)")
        a("s_and_b64 exec, exec, vcc")
        tail = name + "_tail"
        a(f"s_cbranch_execz {tail}")
        a(f"buffer_store_dwordx4 v[56:59], v38, s[36:39], s18 offen {stflag}")
        a.label(tail)
        a("s_mov_b64 exec, s[50:51]")
    a("s_waitcnt lgkmcnt(0)")
    a(f"s_add_u32 s46, s17, {WS_LOC}")
    a(f"buffer_store_dword v7, v1, s[36:39], s46 offen {stflag}")
    a("s_lshl_b32 s46, s2, 13")
    a(f"s_add_u32 s46, s46, {WS_L32}")
    a("s_mov_b64 s[50:51], exec")
    a("v_cmp_gt_u32 vcc, 512, v0")
    a("s_and_b64 exec, exec, vcc")
    l32 = name + "_no32"
    a(f"s_cbranch_execz {l32}")
    a(f"buffer_store_dwordx4 v[64:67], v3, s[36:39], s46 offen {stflag}")
    a.label(l32)
    a("s_mov_b64 exec, s[50:51]")
    a("v_readfirstlane_b32 s47, v0")
    a("s_nop 3")
    a("s_cmp_ge_u32 s47, 64")
    skip = name + "_notab"
    a(f"s_cbranch_scc1 {skip}")
    a("s_lshl_b32 s46, s2, 10")
    a(f"s_add_u32 s46, s46, {WS_TAB}")
    a("v_lshlrev_b32 v6, 4, v6")
    a(f"buffer_store_dwordx4 v[60:63], v6, s[36:39], s46 offen {stflag}")
    a.label(skip)
    if pfxl and pfxl[1] == "late":
        prefetch_x_share(a, name, pfxl[0])
    if stamps:
        a("s_waitcnt vmcnt(0)")
        stamp(a, 68)
        a("s_waitcnt lgkmcnt(0)")
        a("v_readfirstlane_b32 s47, v0")
        a("s_nop 3")
        a("s_cmp_lg_u32 s47, 0")
        a(f"s_cbranch_scc1 {done}")
        a("s_mov_b64 exec, 1")
        for i in range(10):
            a(f"v_mov_b32 v{8+i}, s{60+i}")
        a("v_mov_b32 v6, 0")
        a("s_lshl_b32 s46, s2, 6")
        a(f"s_add_u32 s46, s46, {WS_STAMP}")
        a("buffer_store_dwordx4 v[8:11], v6, s[36:39], s46 offen")
        a("buffer_store_dwordx4 v[12:15], v6, s[36:39], s46 offen offset:16")
        a("buffer_store_dwordx2 v[16:17], v6, s[36:39], s46 offen offset:32")
    if dbg:
        a("s_waitcnt vmcnt(0)")
        stamp(a, 68)
        a("s_waitcnt lgkmcnt(0)")
        a("v_readfirstlane_b32 s47, v0")
        a("s_nop 3")
        a("s_cmp_lg_u32 s47, 0")
        a(f"s_cbranch_scc1 {done}")
        a("s_mov_b64 exec, 1")
        a("v_mov_b32 v8, s60")
        a("v_mov_b32 v9, s62")
        a("v_mov_b32 v10, s66")
        a("v_mov_b32 v11, s68")
        a("v_mov_b32 v6, 0")
        a("s_lshl_b32 s46, s2, 4")
        a(f"s_add_u32 s46, s46, {WS_STAMP}")
        a("buffer_store_dwordx4 v[8:11], v6, s[36:39], s46 offen")
    a.label(done)
    a("s_endpgm")
    kernel_desc(a, name, 80, sgpr=80)
    return (name, 80, 80, K1_THREADS)


if __name__ == "__main__":
    a = Asm()
    a('.amdgcn_target "amdgcn-amd-amdhsa--gfx950"')
    ks = [gen_k1(a, "part_kernel", stflag="sc1"), gen_k1(a, "parts_kernel", stamps=True, stflag="sc1"),
          gen_k1(a, "partl1_kernel", stamps=True, stflag="sc1", ldflag="nt"),
          gen_k1(a, "partl2_kernel", stamps=True, stflag="nt", ldflag="nt"),
          gen_k1(a, "partl3_kernel", stamps=True, stflag="sc1", ldflag="sc1"),
          gen_k1(a, "partl4_kernel", stamps=True, stflag="sc1", ldflag="sc0 sc1 nt")]
    metadata(a, ks, 96)
    open("k1.s", "w").write(a.text())
```

```python
from asmlib import *
from gen_k1 import (E, N, G1, CH, NBK, WS_REC, WS_LOC, WS_TAB, WS_L32, WS_END, WS_STAMP, srd, wave_scan)

K2_THREADS = 512
CAP = 2944
WS_SCR = 16 << 20
WS_SCR_END = WS_SCR + NBK * K2_THREADS * 96
L_CNT = 0
L_FLAG = 256
L_WCNT = 264
L_PN = 288
L_MASK = 320
L_ONES = L_MASK + 33 * 64
L_RAD = 2816
L_RAW = L_RAD + 3072
L_P = L_RAW + CAP * 16
P_PITCH = 2080
L_W = L_P
L_GATE = L_P + 40 * P_PITCH
G_PITCH = 272
L_LB = L_GATE
L_XROW = L_GATE
K2_LDS = L_GATE + 16384
assert L_ONES + 320 <= L_RAD and L_P % 16 == 0 and L_GATE % 16 == 0 and K2_LDS <= 163840

V_TID = 0
V_AADDR, V_YADDR, V_YMASK, V_LBA, V_SADDR, V_MBASE, V_TMP = 1, 2, 3, 4, 5, 6, 7
V_IDX = 8
V_A = 24
V_AN = 28
V_M = 32
V_T = 228
V_RAW = 36
V_FRAG = 68
V_ACC = 100
V_W = 132
V_WF = 164
V_AF = 212
V_END = 252
V_PL = 253
V_WA = 4
V_PT = 236
V_PF = 254
V_X = 228
V_REC = 36
V_LOC = 72
V_RANK = 81
V_SEG = 90
V_I = 91
V_ENT = 92
V_L32 = 108
V_BP = 100
V_WPK = 116
S_B, S_WV = 2, 3
S_X, S_WS, S_WR, S_W0, S_W1, S_OUT, S_XP = 16, 20, 24, 28, 32, 36, 40
S_SELLO, S_SELHI = 44, 45
S_VAL = 46
S_E, S_CUR, S_CUR0, S_LO, S_HI, S_PART, S_PNODE = 64, 65, 66, 67, 68, 69, 70
S_NG, S_G32, S_GEND, S_LG, S_SOFF, S_POFF, S_FRESH, S_PH, S_LEFT = 75, 76, 77, 78, 79, 80, 81, 82, 83
S_T = 84
S_MODE, S_RND, S_NEWW, S_BK = 92, 93, 94, 95
S_LBW = 71
S_FORCE = 74
S_PFB = 12
S_SWP = 62
S_AGC, S_WRAP = 72, 73
S_OUTB, S_NV, S_SCR, S_OG, S_TP, S_NL2E = 56, 57, 58, 59, 60, 61
S_LOB, S_HIB, S_NGB, S_CUR0B, S_PARTB, S_PNODEB, S_RUN, S_RA, S_RB, S_RHOB, S_G = 46, 47, 48, 49, 50, 51, 52, 53, 54, 55, 13
S_ST = 96

PATHS = [
    {(0, 0): (0, 0), (0, 1): (3, 0), (1, 0): (2, 0), (1, 1): (1, 0), (2, 0): (2, 0), (2, 1): (4, 1), (3, 0): (2, 0), (3, 1): (4, 0)},
    {(0, 0): (3, 0), (0, 1): (3, 0), (1, 0): (4, 0), (1, 1): (4, 1), (2, 0): (1, 0), (2, 1): (4, 0), (3, 0): (4, 1), (3, 1): (1, 0)},
]


def path_const(ph):
    k = 0
    for q in range(4):
        for t in range(2):
            p, s = PATHS[ph][(q, t)]
            k |= (p | (s << 3)) << (4 * (2 * q + t))
    return k


OG_SLICES = [[0, 5, 10, 15], [1, 4, 14, 11], [2, 8, 7, 13], [3, 12, 9, 6]]
OG_BLOCKS = [[0, 8192, 8192], [16384, 24576, 32768]]
SI_BLOCK = [0, 1, 2, 2]


def radial_addr(a, ph, vdst, vsgn, vt):
    a(f"v_bfe_u32 v{vt}, v{V_TID}, 3, 3")
    a(f"v_lshlrev_b32 v{vt}, 2, v{vt}")
    a(f"s_mov_b32 s{S_T}, {path_const(ph)}")
    a(f"v_lshrrev_b32 v{vt}, v{vt}, s{S_T}")
    a(f"v_bfe_u32 v{vsgn}, v{vt}, 3, 1")
    a(f"v_and_b32 v{vt}, 7, v{vt}")
    a(f"v_lshlrev_b32 v{vt}, 7, v{vt}")
    a(f"v_and_b32 v{vdst}, 7, v{V_TID}")
    a(f"v_lshl_add_u32 v{vdst}, v{vdst}, 4, v{vt}")
    a(f"s_mov_b32 s{S_T}, 0x80008000")
    a(f"v_mul_lo_u32 v{vsgn}, v{vsgn}, s{S_T}")


def radial_fetch(a, ph):
    vaddr, vsgn, vt, pk = V_FRAG + 16, V_FRAG + 17, V_FRAG + 18, V_FRAG
    radial_addr(a, ph, vaddr, vsgn, vt)
    for d in range(4):
        a(f"ds_read_b128 v[{pk+4*d}:{pk+4*d+3}], v{vaddr} offset:{L_RAD + d*640}")
    for d in range(4):
        a(f"s_waitcnt lgkmcnt({3-d})")
        for i in range(4):
            a(f"v_xor_b32 v{pk+4*d+i}, v{pk+4*d+i}, v{vsgn}")
        for f in range(8):
            src = pk + 4 * d + (f >> 1)
            if f & 1:
                a(f"v_and_b32 v{V_W+4*f+d}, 0xffff0000, v{src}")
            else:
                a(f"v_lshlrev_b32 v{V_W+4*f+d}, 16, v{src}")


ONEVISIT = False
ADOT = False
ATR = False
PK = False
PF3 = None
ABL = set()
EOFF = [j * 16 if j < 4 else 256 + (j - 4) * 16 for j in range(8)]


def read_idx(a, loop=False):
    for j in range(0 if (loop and 'noidx' in ABL) else 8):
        a(f"ds_read_u16 v{V_IDX+2*j}, v{V_SADDR} offset:{EOFF[j]}")


def issue_x(a, flag="", raw=None):
    raw = V_RAW if raw is None else raw
    for j in range(8):
        a(f"buffer_load_dwordx4 v[{raw+4*j}:{raw+4*j+3}], v[{V_IDX+2*j}:{V_IDX+2*j+1}], s[{S_X}:{S_X+3}], s{S_SOFF} idxen offen {flag}")


def advance_load_stream(a):
    a(f"s_sub_u32 s{S_LG}, s{S_LG}, 1")
    a(f"s_cmp_eq_u32 s{S_LG}, 0")
    a(f"s_cselect_b32 s{S_T}, s{S_WRAP}, 0x200")
    a(f"s_cselect_b32 s{S_LG}, s{S_NGB}, s{S_LG}")
    a(f"s_cselect_b32 s{S_SOFF}, 0x100, s{S_SOFF}")
    a(f"v_add_u32 v{V_SADDR}, s{S_T}, v{V_SADDR}")


def range_nodes(a):
    a(f"s_mov_b32 s{S_RUN}, 0")
    a(f"s_mov_b32 s{S_CUR0}, 0")
    a(f"s_mov_b32 s{S_CUR0B}, 0")
    a(f"s_mov_b32 s{S_T+3}, -1")
    for rho in range(8):
        a(f"s_mul_i32 s{S_T}, s{S_G}, {rho+1}")
        a(f"s_lshr_b32 s{S_T}, s{S_T}, 3")
        a(f"s_lshl_b32 s{S_T}, s{S_T}, 5")
        a(f"v_cmp_ge_u32 vcc, s{S_T}, v{V_END}")
        a("s_nop 1")
        a(f"s_bcnt1_i32_b64 s{S_T+1}, vcc")
        if rho >= 1:
            a(f"s_cmp_eq_u32 s{S_T+1}, s{S_T+3}")
            a(f"s_cselect_b32 s{S_T+2}, {1 << rho}, 0")
            a(f"s_cmp_lt_u32 s{S_T+1}, 40")
            a(f"s_cselect_b32 s{S_T+2}, s{S_T+2}, 0")
            a(f"s_or_b32 s{S_RUN}, s{S_RUN}, s{S_T+2}")
        if rho < 7:
            a(f"s_cmp_eq_u32 s{S_WV}, {rho+1}")
            a(f"s_cselect_b32 s{S_CUR0}, s{S_T+1}, s{S_CUR0}")
            a(f"s_cmp_eq_u32 s{S_RHOB}, {rho+1}")
            a(f"s_cselect_b32 s{S_CUR0B}, s{S_T+1}, s{S_CUR0B}")
        a(f"s_mov_b32 s{S_T+3}, s{S_T+1}")
    for lo, c0 in ((S_LO, S_CUR0), (S_LOB, S_CUR0B)):
        a(f"s_cmp_eq_u32 s{lo}, 0")
        a(f"s_cselect_b32 s{c0}, 0, s{c0}")
    for rho, r in ((S_WV, S_RA), (S_RHOB, S_RB)):
        a(f"s_not_b32 s{S_T}, s{S_RUN}")
        a(f"s_sub_u32 s{S_T+1}, 31, s{rho}")
        a(f"s_lshl_b32 s{S_T}, s{S_T}, s{S_T+1}")
        a(f"s_flbit_i32_b32 s{r}, s{S_T}")


def a_reads(a):
    af, yf = V_AF, V_AF + 8
    if ATR:
        a(f"ds_read_b64_tr_b16 v[{af+4}:{af+5}], v{V_AADDR}")
        a(f"ds_read_b64_tr_b16 v[{af+6}:{af+7}], v{V_AADDR} offset:256")
    for j in range(0 if 'noa' in ABL else 8):
        if not ATR:
            a(f"ds_read_u16_d16_hi v{af+j}, v{V_AADDR} offset:{EOFF[j]}")
        if ADOT and j % 2 == 0:
            a(f"ds_read_u16 v{yf+j}, v{V_YADDR} offset:{EOFF[j]}")
        else:
            a(f"ds_read_u16_d16_hi v{yf+j}, v{V_YADDR} offset:{EOFF[j]}")
    a(f"s_sub_u32 s{S_AGC}, s{S_AGC}, 1")
    a(f"s_cmp_eq_u32 s{S_AGC}, 0")
    a(f"s_cselect_b32 s{S_T}, s{S_WRAP}, 0x200")
    a(f"s_cselect_b32 s{S_AGC}, s{S_NGB}, s{S_AGC}")
    a(f"v_add_u32 v{V_AADDR}, s{S_T}, v{V_AADDR}")
    a(f"v_and_b32 v{V_TMP}, s{S_T}, v{V_YMASK}")
    a(f"v_add_u32 v{V_YADDR}, v{V_TMP}, v{V_YADDR}")


def mask_read(a):
    a(f"s_sub_u32 s{S_T}, s{S_E}, s{S_G32}")
    a(f"s_min_u32 s{S_T}, s{S_T}, 32")
    a(f"s_lshl_b32 s{S_T}, s{S_T}, 6")
    a(f"v_add_u32 v{V_TMP}, s{S_T}, v{V_MBASE}")
    a(f"ds_read_b128 v[{V_M}:{V_M+3}], v{V_TMP}")


def a_finish(a, wait=0):
    af, yf = V_AF, V_AF + 8
    a(f"s_waitcnt lgkmcnt({wait})")
    if 'noafin' in ABL:
        return
    if ADOT:
        for i in range(4):
            a(f"v_dot2_f32_bf16 v{af+2*i}, v{af+4+i}, v{yf+2*i}, 0") if i < 2 else None
            a(f"v_dot2_f32_bf16 v{af+2*i+1}, v{af+4+i}, v{yf+2*i+1}, 0") if i < 2 else None
        a(f"v_dot2_f32_bf16 v{af+4}, v{af+6}, v{yf+4}, 0")
        a(f"v_dot2_f32_bf16 v{af+5}, v{af+6}, v{yf+5}, 0")
        a(f"v_dot2_f32_bf16 v{af+6}, v{af+7}, v{yf+6}, 0")
        a(f"v_dot2_f32_bf16 v{af+7}, v{af+7}, v{yf+7}, 0")
        for i in range(4):
            a(f"v_cvt_pk_bf16_f32 v{V_A+i}, v{af+2*i}, v{af+2*i+1}")
        return
    if ATR:
        for i in range(4):
            a(f"v_lshlrev_b32 v{af+2*i}, 16, v{af+4+i}")
            a(f"v_and_b32 v{af+2*i+1}, 0xffff0000, v{af+4+i}")
    if PK:
        for i in range(4):
            a(f"v_pk_mul_f32 v[{af+2*i}:{af+2*i+1}], v[{af+2*i}:{af+2*i+1}], v[{yf+2*i}:{yf+2*i+1}]")
    else:
        for j in range(8):
            a(f"v_mul_f32 v{af+j}, v{af+j}, v{yf+j}")
    for i in range(4):
        a(f"v_cvt_pk_bf16_f32 v{V_A+i}, v{af+2*i}, v{af+2*i+1}")


def mfma_block(a, va, fresh):
    if 'nomfma' in ABL:
        return
    for f in range(8):
        ac = V_ACC + 4 * f
        c = "0" if fresh else f"v[{ac}:{ac+3}]"
        a(f"v_mfma_f32_16x16x32_bf16 v[{ac}:{ac+3}], v[{va}:{va+3}], v[{V_FRAG+4*f}:{V_FRAG+4*f+3}], {c}")


def contract(a, dst):
    if 'noflush' in ABL:
        return
    for f in range(8):
        ac, w = V_ACC + 4 * f, V_W + 4 * f
        a(f"v_mul_f32 v{dst+f}, v{ac}, v{w}")
        for d in range(1, 4):
            a(f"v_fmac_f32 v{dst+f}, v{ac+d}, v{w+d}")


STAMP_SETS = {
    True: {"tab": 1, "records": 2, "sorted": 3, "mainend": 4, "pdone": 5, "issued": 6, "done": 7},
    "epi": {"mainend": 1, "barA": 2, "pdone": 3, "gemm": 4, "gate": 5, "issued": 6, "done": 7},
    "mid": {"sorted": 1, "xissued": 2, "loopstart": 3, "firstdata": 4, "phaseB": 5, "mainend": 6, "done": 7},
    "clk": {"phaseB": 2, "mainend": 4, "done": 7},
    "pro": {"tab": 1, "ent": 2, "ldissued": 3, "ranked": 4, "bar1": 5, "records": 6, "sorted": 7},
}


def stamp_at(a, stamps, key):
    if stamps and key in STAMP_SETS[stamps]:
        stamp_regs(a, STAMP_SETS[stamps][key])
        if stamps == "clk" and key != "done":
            a(f"s_memtime s[{S_ST}:{S_ST+1}]")
            a("s_waitcnt lgkmcnt(0)")
            a(f"s_mov_b32 s{4+STAMP_SETS[stamps][key]+1}, s{S_ST}")


def stamp_regs(a, k):
    a(f"s_memrealtime s[{S_ST}:{S_ST+1}]")
    a("s_waitcnt lgkmcnt(0)")
    a(f"s_mov_b32 s{4+k}, s{S_ST}")


def prefetch_x(a, ph, v0, v1):
    a(f"s_lshr_b32 s{S_T}, s2, 3")
    a(f"s_mul_i32 s{S_T}, s{S_T}, {313*512}")
    a(f"s_add_u32 s{S_T}, s{S_T}, {ph*256}")
    a(f"v_lshrrev_b32 v{v0}, 1, v{V_TID}")
    a(f"v_lshlrev_b32 v{v0}, 9, v{v0}")
    a(f"v_and_b32 v{v1}, 1, v{V_TID}")
    a(f"v_lshl_add_u32 v{v0}, v{v1}, 7, v{v0}")
    a(f"v_add_u32 v{v0}, s{S_T}, v{v0}")
    a(f"v_add_u32 v{v1}, {256*512}, v{v0}")
    a(f"v_cmp_gt_u32 vcc, {626-512}, v{V_TID}")
    a(f"v_mov_b32 v{V_TMP}, 0x7fffff00")
    a(f"buffer_load_dword v{v0}, v{v0}, s[{S_XP}:{S_XP+3}], 0 offen")
    a(f"v_cndmask_b32 v{v1}, v{V_TMP}, v{v1}, vcc")
    a(f"buffer_load_dword v{v1}, v{v1}, s[{S_XP}:{S_XP+3}], 0 offen")


def perm_tile(a, f):
    if 'noperm' in ABL:
        return
    dd, hi = f >> 1, f & 1
    for i in range(4):
        a(f"v_perm_b32 v{V_FRAG+4*f+i}, v{V_RAW+(2*i+1)*4+dd}, v{V_RAW+(2*i)*4+dd}, s{S_SELHI if hi else S_SELLO}")


def mfma_tile(a, f, va, fresh):
    if 'nomfma' in ABL:
        return
    ac = V_ACC + 4 * f
    c = "0" if fresh else f"v[{ac}:{ac+3}]"
    a(f"v_mfma_f32_16x16x32_bf16 v[{ac}:{ac+3}], v[{va}:{va+3}], v[{V_FRAG+4*f}:{V_FRAG+4*f+3}], {c}")


def contract_tile(a, f):
    if 'noflush' in ABL:
        return
    ac, w = V_ACC + 4 * f, V_W + 4 * f
    if PK:
        t = V_AN + 2 * (f & 1)
        a(f"v_pk_mul_f32 v[{t}:{t+1}], v[{ac}:{ac+1}], v[{w}:{w+1}]")
        a(f"v_pk_fma_f32 v[{t}:{t+1}], v[{ac+2}:{ac+3}], v[{w+2}:{w+3}], v[{t}:{t+1}]")
        a(f"v_add_f32 v{V_T+f}, v{t}, v{t+1}")
        return
    a(f"v_mul_f32 v{V_T+f}, v{ac}, v{w}")
    for d in range(1, 4):
        a(f"v_fmac_f32 v{V_T+f}, v{ac+d}, v{w+d}")


def next_node(a):
    a(f"s_add_u32 s{S_CUR}, s{S_CUR}, 1")
    a(f"v_readlane_b32 s{S_E}, v{V_END}, s{S_CUR}")
    a(f"v_add_u32 v{V_TMP}, s{S_POFF}, v{V_PL}")
    a(f"s_add_u32 s{S_POFF}, s{S_POFF}, {P_PITCH}")


def store_row(a):
    for i in range(4):
        a(f"v_cvt_pk_bf16_f32 v{V_T+i}, v{V_T+2*i}, v{V_T+2*i+1}")
    a(f"ds_write_b128 v{V_TMP}, v[{V_T}:{V_T+3}]")


def zero_acc(a):
    for i in range(32):
        a(f"v_mov_b32 v{V_ACC+i}, 0")


def visit(a, name, issue, xflag, loop, endrange, prio=None):
    pb, after, pbmore, pbtail = (a.uid(name + x) for x in ("_pb", "_after", "_more", "_pbt"))

    def gather_part(va):
        a("s_waitcnt vmcnt(0)")
        if prio == "crit":
            a("s_setprio 1")
        perm_tile(a, 0)
        for f in range(1, 8):
            perm_tile(a, f)
            mfma_tile(a, f - 1, va, False)
        if issue and 'noload' not in ABL:
            for j in range(2):
                a(f"buffer_load_dwordx4 v[{V_RAW+4*j}:{V_RAW+4*j+3}], v[{V_IDX+2*j}:{V_IDX+2*j+1}], s[{S_X}:{S_X+3}], s{S_SOFF} idxen offen {xflag}")
        else:
            a("s_nop 1")
        mfma_tile(a, 7, va, False)
        if issue:
            if 'noload' not in ABL:
                for j in range(2, 8):
                    a(f"buffer_load_dwordx4 v[{V_RAW+4*j}:{V_RAW+4*j+3}], v[{V_IDX+2*j}:{V_IDX+2*j+1}], s[{S_X}:{S_X+3}], s{S_SOFF} idxen offen {xflag}")
            if prio == "crit":
                a("s_setprio 0")
            advance_load_stream(a)
            read_idx(a, True)
            a_reads(a)

    a(f"s_add_u32 s{S_GEND}, s{S_G32}, 32")
    a(f"s_cmp_le_u32 s{S_E}, s{S_GEND}")
    a(f"s_cbranch_scc1 {pb}")
    gather_part(V_A)
    a.label(after)
    a(f"s_mov_b32 s{S_G32}, s{S_GEND}")
    a(f"s_cmp_ge_u32 s{S_G32}, s{S_HI}")
    a(f"s_cbranch_scc1 {endrange}")
    if issue:
        a.label(name + "_resume")
        if PF3:
            a(f"s_cmp_eq_u32 s{S_LEFT}, s{S_PFB}")
            a(f"s_cbranch_scc1 {name}_pf3")
            a.label(name + "_pf3r")
        if isinstance(prio, tuple):
            a(f"s_cmp_eq_u32 s{S_LEFT}, s{S_SWP}")
            a(f"s_cbranch_scc1 {name}_swp")
            a.label(name + "_swpr")
        mask_read(a)
        a_finish(a, 1)
        a(f"s_sub_u32 s{S_LEFT}, s{S_LEFT}, 1")
        a(f"s_cmp_eq_u32 s{S_LEFT}, 0")
        a(f"s_cbranch_scc0 {loop}")
        if ONEVISIT:
            for j in range(8):
                a(f"v_mov_b32 v{V_IDX+2*j}, 0xffff")
            a(f"s_branch {loop}")
        else:
            a(f"s_branch {name}_final")
    else:
        a(f"s_branch {endrange}")
    if issue and isinstance(prio, tuple):
        a.label(name + "_swp")
        set_prio(a, name, False)
        a(f"s_branch {name}_swpr")
    if issue and PF3:
        a.label(name + "_pf3")
        a(f"s_lshr_b32 s{S_T}, s2, 3")
        a(f"s_mul_i32 s{S_T}, s{S_T}, {313*512}")
        a(f"s_mul_i32 s{S_T+1}, s{S_WV}, {39*512}")
        a(f"s_add_u32 s{S_T}, s{S_T}, s{S_T+1}")
        a(f"s_add_u32 s{S_T}, s{S_T}, 256")
        a(f"v_and_b32 v{V_TMP}, 63, v0")
        a(f"v_lshrrev_b32 v{V_PF+1}, 1, v{V_TMP}")
        a(f"v_lshlrev_b32 v{V_PF+1}, 9, v{V_PF+1}")
        a(f"v_and_b32 v{V_PF}, 1, v{V_TMP}")
        a(f"v_lshl_add_u32 v{V_PF+1}, v{V_PF}, 7, v{V_PF+1}")
        a(f"v_cmp_gt_u32 vcc, {PF3[0]}, v{V_TMP}")
        a("s_and_b64 exec, exec, vcc")
        a(f"buffer_load_dword v{V_PF}, v{V_PF+1}, s[{S_XP}:{S_XP+3}], s{S_T} offen")
        a("s_mov_b64 exec, -1")
        a(f"s_branch {name}_pf3r")
    a.label(pb)
    a("s_waitcnt lgkmcnt(0)")
    for i in range(4):
        a(f"v_and_b32 v{V_AN+i}, v{V_A+i}, v{V_M+i}")
    for i in range(4):
        a(f"v_xor_b32 v{V_A+i}, v{V_A+i}, v{V_AN+i}")
    next_node(a)
    a(f"s_mov_b32 s{S_T+3}, s{S_G32}")
    gather_part(V_AN)
    a(f"s_sub_u32 s{S_T}, s{S_POFF}, {P_PITCH}")
    a(f"v_add_u32 v{V_TMP}, s{S_T}, v{V_PL}")
    a(f"s_cmp_le_u32 s{S_E}, s{S_GEND}")
    a(f"s_cbranch_scc1 {pbmore}")
    a.label(pbtail)
    for f in range(8):
        contract_tile(a, f)
        mfma_tile(a, f, V_A, True)
    store_row(a)
    a(f"s_branch {after}")
    a.label(pbmore)
    a("s_nop 7")
    for f in range(8):
        contract_tile(a, f)
    store_row(a)
    a(f"s_sub_u32 s{S_T}, s{S_E}, s{S_G32}")
    a(f"s_lshl_b32 s{S_T}, s{S_T}, 6")
    a(f"v_add_u32 v{V_TMP}, s{S_T}, v{V_MBASE}")
    a("s_waitcnt lgkmcnt(0)")
    a(f"ds_read_b128 v[{V_M}:{V_M+3}], v{V_TMP}")
    next_node(a)
    a("s_waitcnt lgkmcnt(0)")
    for i in range(4):
        a(f"v_and_b32 v{V_AN+i}, v{V_A+i}, v{V_M+i}")
    for i in range(4):
        a(f"v_xor_b32 v{V_A+i}, v{V_A+i}, v{V_AN+i}")
    a("s_nop 1")
    for f in range(8):
        mfma_tile(a, f, V_AN, True)
    a(f"s_cmp_le_u32 s{S_E}, s{S_GEND}")
    a(f"s_cbranch_scc1 {pbmore}")
    a("s_nop 7")
    a(f"s_branch {pbtail}")


def set_prio(a, name, hi_young):
    l0, l1 = a.uid(name + '_p0'), a.uid(name + '_p1')
    a(f"s_cmp_ge_u32 s{S_WV}, 4")
    a(f"s_cbranch_scc{0 if hi_young else 1} {l0}")
    a("s_setprio 1")
    a(f"s_branch {l1}")
    a.label(l0)
    a("s_setprio 0")
    a.label(l1)


def main_loop(a, name, xflag, endmain, prio=None, stamps=None):
    loop, endrange = name + "_loop", name + "_endrange"
    a(f"s_mov_b32 s{S_G32}, s{S_LO}")
    a(f"s_mov_b32 s{S_LG}, s{S_NG}")
    a(f"s_mov_b32 s{S_AGC}, s{S_NG}")
    a(f"s_mov_b32 s{S_SOFF}, 0")
    a(f"s_mov_b32 s{S_PH}, 0")
    a(f"s_sub_u32 s{S_T}, s{S_LOB}, s{S_HI}")
    a(f"s_add_u32 s{S_T}, s{S_T}, 32")
    a(f"s_lshl_b32 s{S_WRAP}, s{S_T}, 4")
    a(f"s_add_u32 s{S_LEFT}, s{S_NG}, s{S_NGB}")
    a(f"s_sub_u32 s{S_LEFT}, s{S_LEFT}, 1")
    if PF3:
        a(f"s_add_u32 s{S_PFB}, s{S_NGB}, {PF3[1]}")
    read_idx(a)
    a("s_waitcnt lgkmcnt(0)")
    weight_frags(a, name)
    issue_x(a, xflag)
    stamp_at(a, stamps, "xissued")
    advance_load_stream(a)
    range_nodes(a)
    a(f"s_mov_b32 s{S_CUR}, s{S_CUR0}")
    a(f"v_readlane_b32 s{S_E}, v{V_END}, s{S_CUR}")
    a(f"s_mul_i32 s{S_POFF}, s{S_CUR}, {P_PITCH}")
    radial_fetch(a, 0)
    read_idx(a)
    a_reads(a)
    mask_read(a)
    zero_acc(a)
    a_finish(a, 1)
    weight_frags_wait(a, name)
    if prio in ("swap", "young") or isinstance(prio, tuple):
        set_prio(a, name, True)
    if isinstance(prio, tuple):
        a(f"s_mul_i32 s{S_SWP}, s{S_NGB}, {prio[0]}")
        a(f"s_lshr_b32 s{S_SWP}, s{S_SWP}, 3")
    stamp_at(a, stamps, "loopstart")
    if stamps == "mid":
        a("s_waitcnt vmcnt(0)")
        stamp_at(a, stamps, "firstdata")
    a.label(loop)
    visit(a, name + "_v", True, xflag, loop, endrange, prio)
    if not ONEVISIT:
        a.label(name + "_v_final")
        visit(a, name + "_f", False, xflag, loop, endrange, prio)
    a.label(endrange)
    nopart = a.uid(name + "_nopart")
    a(f"s_cmp_eq_u32 s{S_E}, 0x7fffffff")
    a(f"s_cbranch_scc1 {nopart}")
    a("s_nop 7")
    for f in range(8):
        contract_tile(a, f)
    pb_, pj_ = a.uid(name + "_ptb"), a.uid(name + "_ptj")
    a(f"s_cmp_lg_u32 s{S_PH}, 0")
    a(f"s_cbranch_scc1 {pb_}")
    for i in range(8):
        a(f"v_mov_b32 v{V_PT+i}, v{V_T+i}")
    a(f"s_mov_b32 s{S_PART}, 1")
    a(f"s_mul_i32 s{S_PNODE}, s{S_CUR}, {P_PITCH}")
    a(f"s_branch {pj_}")
    a.label(pb_)
    for i in range(8):
        a(f"v_mov_b32 v{V_PT+8+i}, v{V_T+i}")
    a(f"s_mov_b32 s{S_PARTB}, 1")
    a(f"s_mul_i32 s{S_PNODEB}, s{S_CUR}, {P_PITCH}")
    a.label(pj_)
    a.label(nopart)
    a(f"s_cmp_lg_u32 s{S_PH}, 0")
    a(f"s_cbranch_scc1 {endmain}")
    a(f"s_mov_b32 s{S_PH}, 1")
    a(f"s_mov_b32 s{S_G32}, s{S_LOB}")
    a(f"s_mov_b32 s{S_HI}, s{S_HIB}")
    a(f"s_mov_b32 s{S_CUR}, s{S_CUR0B}")
    a(f"v_readlane_b32 s{S_E}, v{V_END}, s{S_CUR}")
    a(f"s_mul_i32 s{S_POFF}, s{S_CUR}, {P_PITCH}")
    a(f"s_add_u32 s{S_POFF}, s{S_POFF}, 1024")
    if prio == "swap":
        set_prio(a, name, False)
    stamp_at(a, stamps, "phaseB")
    radial_fetch(a, 1)
    zero_acc(a)
    a(f"s_branch {name}_v_resume")


def weight_transfers(a, name):
    a("; ---- output-GEMM weights to LDS (swizzled 32-byte pieces), radial weights to registers")
    a("v_and_b32 v8, 63, v0")
    a("v_lshrrev_b32 v9, 3, v8")
    a("v_bfe_u32 v10, v8, 1, 2")
    a("v_bfe_u32 v11, v8, 4, 1")
    a("v_xor_b32 v10, v10, v11")
    a("v_lshlrev_b32 v9, 7, v9")
    a("v_lshl_add_u32 v9, v10, 5, v9")
    a("v_and_b32 v10, 1, v8")
    a("v_lshl_add_u32 v9, v10, 4, v9")
    a("v_xor_b32 v10, 64, v9")
    a(f"s_lshl_b32 s{S_T+3}, s{S_WV}, 11")
    a(f"s_add_u32 s{S_T+4}, s{S_T+3}, {L_W}")
    a(f"s_mov_b32 m0, s{S_T+4}")
    a(f"s_add_u32 s{S_T+5}, s{S_T+3}, 1024")
    a(f"buffer_load_dwordx4 v9, s[{S_W0}:{S_W0+3}], s{S_T+3} offen lds")
    a(f"s_add_u32 s{S_T+4}, s{S_T+4}, 1024")
    a(f"s_mov_b32 m0, s{S_T+4}")
    a("s_nop 0")
    a(f"buffer_load_dwordx4 v10, s[{S_W0}:{S_W0+3}], s{S_T+5} offen lds")
    a(f"s_mul_i32 s{S_T+3}, s{S_WV}, 3072")
    for t in range(3):
        a(f"s_add_u32 s{S_T+5}, s{S_WV}, {t}")
        a(f"s_and_b32 s{S_T+5}, s{S_T+5}, 1")
        a(f"s_lshl_b32 s{S_T+5}, s{S_T+5}, 6")
        a(f"v_xor_b32 v11, s{S_T+5}, v9")
        a(f"s_add_u32 s{S_T+5}, s{S_T+3}, {t*1024}")
        a(f"s_add_u32 s{S_T+4}, s{S_T+5}, {L_W + 16384}")
        a(f"s_mov_b32 m0, s{S_T+4}")
        a("s_nop 0")
        a(f"buffer_load_dwordx4 v11, s[{S_W1}:{S_W1+3}], s{S_T+5} offen lds")
    a(f"s_mul_hi_u32 s{S_T+3}, s{S_WV}, 0x55555556")
    a(f"s_mul_i32 s{S_T+3}, s{S_T+3}, 3")
    a(f"s_sub_u32 s{S_T+3}, s{S_WV}, s{S_T+3}")
    a(f"s_lshl_b32 s{S_T+3}, s{S_T+3}, 10")
    a(f"s_add_u32 s{S_T+4}, s{S_T+3}, {L_RAD}")
    a(f"s_mov_b32 m0, s{S_T+4}")
    a("v_lshlrev_b32 v11, 4, v8")
    a(f"buffer_load_dwordx4 v11, s[{S_WR}:{S_WR+3}], s{S_T+3} offen lds")


def weight_frag_addr(a):
    t = V_X
    a(f"v_bfe_u32 v{t}, v0, 4, 2")
    a(f"v_bfe_u32 v{t+1}, v0, 2, 2")
    a(f"v_and_b32 v{t+2}, 3, v0")
    a(f"v_lshrrev_b32 v{t+4}, 1, v{t+1}")
    a(f"v_and_b32 v{t+5}, 1, v{t}")
    a(f"v_lshl_add_u32 v{t+4}, v{t+5}, 1, v{t+4}")
    a(f"s_and_b32 s{S_T}, s{S_WV}, 1")
    a(f"s_lshl_b32 s{S_T}, s{S_T}, 1")
    a(f"v_lshrrev_b32 v{t+5}, 1, v{t+2}")
    a(f"v_add_u32 v{t+5}, s{S_T}, v{t+5}")
    a(f"v_xor_b32 v{t+4}, v{t+5}, v{t+4}")
    a(f"v_lshlrev_b32 v{t+3}, 3, v{t}")
    a(f"v_add_u32 v{t+3}, v{t+3}, v{t+1}")
    a(f"v_lshlrev_b32 v{t+3}, 7, v{t+3}")
    a(f"v_lshl_add_u32 v{t+3}, v{t+4}, 5, v{t+3}")
    a(f"v_and_b32 v{t+5}, 1, v{t+2}")
    a(f"v_lshl_add_u32 v{t+3}, v{t+5}, 4, v{t+3}")
    a(f"v_add_u32 v{V_WA}, {L_W}, v{t+3}")


def weight_frags(a, name):
    nf2 = name + "_nf2"
    a(f"s_cmp_lg_u32 s{S_MODE}, 0")
    a(f"s_cbranch_scc1 {nf2}")
    a(f"s_cmp_lt_u32 s{S_WV}, 2")
    for bi in range(3):
        a(f"s_mov_b32 s{S_T+1}, {OG_BLOCKS[1][bi]}")
        a(f"s_cselect_b32 s{S_T+1}, {OG_BLOCKS[0][bi]}, s{S_T+1}")
        a(f"v_add_u32 v{V_TMP}, s{S_T+1}, v{V_WA}")
        for ks in range(2):
            for hf in range(2):
                r = V_WF + 16 * bi + 8 * ks + 4 * hf
                for rd in range(2):
                    a(f"ds_read_b64_tr_b16 v[{r+2*rd}:{r+2*rd+1}], v{V_TMP} offset:{rd*512 + ks*4096 + hf*8}")
    a(f"v_mov_b32 v{V_TMP}, {L_WCNT}")
    a(f"v_mov_b32 v{V_WA}, 1")
    a("s_mov_b64 exec, 1")
    a(f"ds_add_u32 v{V_TMP}, v{V_WA}")
    a("s_mov_b64 exec, -1")
    a.label(nf2)


def weight_frags_wait(a, name):
    done_, spin = name + "_wok", name + "_wspin"
    a(f"s_cmp_lg_u32 s{S_MODE}, 0")
    a(f"s_cbranch_scc1 {done_}")
    a(f"v_mov_b32 v{V_TMP}, {L_WCNT}")
    a.label(spin)
    a(f"ds_read_b32 v{V_WA}, v{V_TMP}")
    a("s_waitcnt lgkmcnt(0)")
    a(f"v_readfirstlane_b32 s{S_T}, v{V_WA}")
    a("s_nop 3")
    a(f"s_cmp_lt_u32 s{S_T}, 8")
    a(f"s_cbranch_scc1 {spin}")
    a.label(done_)


def gen_k2(a, name, stamps=False, dump=None, xflag="", pfa=False, pfb=False, stflag="", xcdmap=True, pfr=0, abl=(), prio=None, rflag='', pf2=0, pf3=None, pk=False, atr=False, onevisit=False, adot=False):
    global PF3, PK, ATR, ONEVISIT, ADOT
    ADOT = adot
    atr = atr or adot
    ONEVISIT = onevisit
    PF3 = pf3
    PK = pk
    ATR = atr
    global ABL
    ABL = set(abl)
    a("; =====================================================================================")
    a("; =====================================================================================")
    kernel_header(a, name)
    done = name + "_done"
    a(f"s_cmp_ge_u32 s2, {NBK}")
    a(f"s_cbranch_scc1 {done}")
    if stamps:
        a("s_memrealtime s[98:99]")
    a("s_load_dwordx2 s[4:5], s[0:1], 0")
    a("s_load_dwordx4 s[8:11], s[0:1], 40")
    a("s_load_dwordx2 s[12:13], s[0:1], 56")
    a("s_load_dwordx2 s[14:15], s[0:1], 72")
    a("s_load_dwordx2 s[6:7], s[0:1], 88")
    a(f"v_lshrrev_b32 v1, 6, v0")
    if xcdmap:
        a(f"s_and_b32 s{S_BK}, s2, 7")
        a(f"s_lshl_b32 s{S_BK}, s{S_BK}, 5")
        a(f"s_lshr_b32 s{S_T}, s2, 3")
        a(f"s_or_b32 s{S_BK}, s{S_BK}, s{S_T}")
    else:
        a(f"s_mov_b32 s{S_BK}, s2")
    a(f"v_readfirstlane_b32 s{S_WV}, v1")
    a("; ---- descriptors")
    a("s_waitcnt lgkmcnt(0)")
    srd(a, S_WS, 6, WS_SCR_END)
    a(f"s_lshl_b32 s{S_T}, s{S_WV}, 15")
    a(f"s_lshl_b32 s{S_T+1}, s{S_BK}, 2")
    a(f"s_add_u32 s{S_T}, s{S_T}, s{S_T+1}")
    a(f"s_add_u32 s{S_T}, s{S_T}, {WS_TAB}")
    a("v_and_b32 v2, 31, v0")
    a("v_lshlrev_b32 v2, 10, v2")
    a(f"buffer_load_dword v{V_SEG}, v2, s[{S_WS}:{S_WS+3}], s{S_T} offen")
    a(f"s_lshl_b32 s{S_T}, s{S_WV}, 18")
    a(f"s_lshl_b32 s{S_T+1}, s{S_BK}, 5")
    a(f"s_add_u32 s{S_T}, s{S_T}, s{S_T+1}")
    a(f"s_add_u32 s{S_T}, s{S_T}, {WS_L32}")
    a("v_lshlrev_b32 v2, 3, v2")
    a(f"buffer_load_dwordx4 v[{V_L32}:{V_L32+3}], v2, s[{S_WS}:{S_WS+3}], s{S_T} offen")
    a(f"buffer_load_dwordx4 v[{V_L32+4}:{V_L32+7}], v2, s[{S_WS}:{S_WS+3}], s{S_T} offen offset:16")
    a("v_lshrrev_b32 v1, 4, v0")
    a("v_bfe_u32 v2, v0, 2, 2")
    a("v_lshlrev_b32 v2, 2, v2")
    a("v_and_b32 v3, 1, v0")
    a("v_lshl_add_u32 v2, v3, 1, v2")
    a("v_bfe_u32 v3, v0, 1, 1")
    a("v_lshl_add_u32 v2, v3, 4, v2")
    a("v_mov_b32 v4, 0")
    a("v_mov_b32 v5, 0xffff")
    a("v_cmp_lt_u32 vcc, v2, v1")
    a("s_nop 1")
    a("v_cndmask_b32 v6, v4, v5, vcc")
    a("v_add_u32 v2, 1, v2")
    a("v_mov_b32 v5, 0xffff0000")
    a("v_cmp_lt_u32 vcc, v2, v1")
    a("s_nop 1")
    a("v_cndmask_b32 v7, v4, v5, vcc")
    a("v_or_b32 v6, v6, v7")
    a("v_lshlrev_b32 v8, 2, v0")
    a(f"v_add_u32 v9, {L_MASK}, v8")
    a("ds_write_b32 v9, v6")
    a("v_mov_b32 v5, -1")
    a("v_mov_b32 v6, 0x3f803f80")
    a("v_cmp_gt_u32 vcc, 80, v0")
    a("s_and_b64 exec, exec, vcc")
    a(f"ds_write_b32 v8, v6 offset:{L_ONES}")
    a(f"ds_write_b32 v8, v4 offset:{L_CNT}")
    a("v_cmp_gt_u32 vcc, 16, v0")
    a("s_and_b64 exec, exec, vcc")
    a(f"ds_write_b32 v9, v5 offset:2048")
    a("s_mov_b64 exec, -1")
    if pfr:
        a(f"s_lshr_b32 s{S_T}, s2, 3")
        a(f"s_lshl_b32 s{S_T}, s{S_T}, 3")
        a(f"s_add_u32 s{S_T}, s{S_T}, s{S_WV}")
        a(f"s_mul_i32 s{S_T}, s{S_T}, {CH*16}")
        a(f"s_and_b32 s{S_T+1}, s2, 7")
        a(f"s_mul_i32 s{S_T+1}, s{S_T+1}, 5000")
        a(f"s_add_u32 s{S_T}, s{S_T}, s{S_T+1}")
        a(f"s_max_u32 s{S_T}, s{S_T}, {pfr}")
        a(f"s_sub_u32 s{S_T}, s{S_T}, {pfr}")
        a("v_and_b32 v2, 63, v0")
        a("v_lshlrev_b32 v2, 7, v2")
        a(f"v_mov_b32 v3, 0x7fffff00")
        a(f"v_cmp_gt_u32 vcc, {5000 + 2*pfr + 128}, v2")
        a("s_nop 1")
        a("v_cndmask_b32 v2, v3, v2, vcc")
        a(f"buffer_load_dword v{V_X+10}, v2, s[{S_WS}:{S_WS+3}], s{S_T} offen")
    if 'l1' in ABL:
        srd(a, S_X, 4, N * 512)
    else:
        srd(a, S_X, 4, N, stride=512)
    srd(a, S_XP, 4, N * 512)
    srd(a, S_WR, 8, 2560)
    srd(a, S_W0, 10, 16384)
    srd(a, S_W1, 12, 24576)
    srd(a, S_OUT, 14, N * 512)
    if stamps:
        a(f"s_lshl_b32 s{S_ST+4}, s2, 3")
        a(f"s_add_u32 s{S_ST+4}, s{S_ST+4}, s{S_WV}")
        a(f"s_lshl_b32 s{S_ST+4}, s{S_ST+4}, 6")
        a(f"s_add_u32 s{S_ST+4}, s{S_ST+4}, {WS_STAMP}")
    a(f"s_mov_b32 s{S_SELLO}, 0x05040100")
    a(f"s_mov_b32 s{S_SELHI}, 0x07060302")
    a(f"v_and_b32 v{V_I}, 15, v0")
    a("v_bfe_u32 v1, v0, 4, 2")
    a("v_lshlrev_b32 v5, 8, v1")
    a("v_lshlrev_b32 v1, 5, v1")
    a(f"s_lshl_b32 s{S_T}, s{S_WV}, 10")
    a(f"s_add_u32 s{S_LBW}, s{S_T}, {L_LB}")
    a(f"v_add3_u32 v{V_LBA}, v5, v{V_I}, s{S_LBW}")
    a("v_and_b32 v6, 31, v0")
    a("v_lshlrev_b32 v6, 5, v6")
    a(f"v_add_u32 v6, s{S_LBW}, v6")
    a("s_waitcnt lgkmcnt(0)")
    a("s_barrier")
    a(f"s_mov_b32 s{S_MODE}, 0")
    a("s_waitcnt vmcnt(0)")
    stamp_at(a, stamps, 'tab')
    a(f"ds_write_b128 v6, v[{V_L32}:{V_L32+3}]")
    a(f"ds_write_b128 v6, v[{V_L32+4}:{V_L32+7}] offset:16")
    for it in range(8):
        a(f"v_add_u32 v{V_BP+it}, {4*it}, v1")
        a(f"ds_bpermute_b32 v{V_ENT+it}, v{V_BP+it}, v{V_SEG}")
    a("s_waitcnt lgkmcnt(0)")
    stamp_at(a, stamps, "ent")
    rnd = name + "_round"
    a.label(rnd)
    for it in range(8):
        e = V_ENT + it
        a(f"v_lshrrev_b32 v{V_X}, 20, v{e}")
        a(f"v_and_b32 v{e}, 0xfffff, v{e}")
        a(f"v_cmp_lt_u32 s[{S_VAL+2*it}:{S_VAL+2*it+1}], v{V_I}, v{V_X}")
        a(f"v_add_u32 v{e}, v{e}, v{V_I}")
        a(f"v_lshlrev_b32 v{V_RANK+it}, 4, v{e}")
    for it in range(8):
        a(f"s_mov_b64 exec, s[{S_VAL+2*it}:{S_VAL+2*it+1}]")
        a(f"buffer_load_dwordx4 v[{V_REC+4*it}:{V_REC+4*it+3}], v{V_RANK+it}, s[{S_WS}:{S_WS+3}], 0 offen {rflag}")
    a("s_mov_b64 exec, -1")
    noov = name + "_noov"
    a(f"s_mov_b32 s{S_T+2}, 0")
    a(f"s_mov_b32 s{S_FORCE}, 0")
    a(f"v_mov_b32 v{V_X+1}, 0")
    a(f"v_mov_b32 v{V_X+4}, s{S_LBW}")
    a(f"v_and_b32 v{V_X+2}, 63, v0")
    a(f"s_cmp_lg_u32 s{S_MODE}, 0")
    a(f"s_cbranch_scc1 {noov}")
    a(f"s_mov_b32 s{S_T+3}, {17 << 20}")
    a(f"v_cmp_le_u32 vcc, s{S_T+3}, v{V_SEG}")
    a(f"s_mov_b32 s{S_T+7}, {33 << 20}")
    a(f"s_mov_b32 s{S_T+4}, vcc_lo")
    a(f"v_cmp_le_u32 vcc, s{S_T+7}, v{V_SEG}")
    a("s_nop 1")
    a(f"s_cmp_eq_u32 vcc_lo, 0")
    a(f"s_cselect_b32 s{S_FORCE}, 0, 1")
    a(f"s_cselect_b32 s{S_T+4}, s{S_T+4}, 0")
    ovl = name + "_ovl"
    a.label(ovl)
    a(f"s_cmp_eq_u32 s{S_T+4}, 0")
    a(f"s_cbranch_scc1 {noov}")
    a(f"s_ff1_i32_b32 s{S_T+3}, s{S_T+4}")
    a(f"s_bitset0_b32 s{S_T+4}, s{S_T+3}")
    a(f"v_readlane_b32 s{S_T+5}, v{V_SEG}, s{S_T+3}")
    a(f"s_lshl_b32 s{S_T+3}, s{S_T+3}, 5")
    a(f"s_add_u32 s{S_T+3}, s{S_T+3}, s{S_LBW}")
    a(f"s_add_u32 s{S_T+3}, s{S_T+3}, 16")
    a(f"s_sub_u32 s{S_T+3}, s{S_T+3}, s{S_T+2}")
    a(f"s_lshr_b32 s{S_T+6}, s{S_T+5}, 20")
    a(f"s_sub_u32 s{S_T+6}, s{S_T+6}, 16")
    a(f"s_and_b32 s{S_T+5}, s{S_T+5}, 0xfffff")
    a(f"s_add_u32 s{S_T+5}, s{S_T+5}, 16")
    a(f"s_sub_u32 s{S_T+5}, s{S_T+5}, s{S_T+2}")
    a(f"v_subrev_u32 v{V_X+3}, s{S_T+2}, v{V_X+2}")
    a(f"v_cmp_gt_u32 vcc, s{S_T+6}, v{V_X+3}")
    a(f"v_add_u32 v{V_X+3}, s{S_T+5}, v{V_X+2}")
    a(f"v_add_u32 v{V_X+5}, s{S_T+3}, v{V_X+2}")
    a(f"s_add_u32 s{S_T+2}, s{S_T+2}, s{S_T+6}")
    a(f"v_cndmask_b32 v{V_X+1}, v{V_X+1}, v{V_X+3}, vcc")
    a(f"v_cndmask_b32 v{V_X+4}, v{V_X+4}, v{V_X+5}, vcc")
    a(f"s_branch {ovl}")
    a.label(noov)
    a(f"s_min_u32 s{S_T+3}, s{S_T+2}, 64")
    a(f"v_cmp_gt_u32 s[{S_VAL+16}:{S_VAL+17}], s{S_T+3}, v{V_X+2}")
    a(f"v_lshlrev_b32 v{V_RANK+8}, 4, v{V_X+1}")
    a("s_nop 3")
    a(f"s_mov_b64 exec, s[{S_VAL+16}:{S_VAL+17}]")
    a(f"buffer_load_dwordx4 v[{V_REC+32}:{V_REC+35}], v{V_RANK+8}, s[{S_WS}:{S_WS+3}], 0 offen {rflag}")
    a("s_mov_b64 exec, -1")
    stamp_at(a, stamps, "ldissued")
    lslow, ljoin = name + "_lslow", name + "_ljoin"
    a(f"s_cmp_lg_u32 s{S_MODE}, 0")
    a(f"s_cbranch_scc1 {lslow}")
    for it in range(8):
        a(f"ds_read_u8 v{V_LOC+it}, v{V_LBA} offset:{32*it}")
    a(f"ds_read_u8 v{V_LOC+8}, v{V_X+4}")
    a(f"s_cmp_gt_u32 s{S_T+2}, 64")
    a(f"s_cselect_b32 s{S_FORCE}, 1, s{S_FORCE}")
    a(f"s_cmp_eq_u32 s{S_FORCE}, 0")
    nofl = name + "_nofl"
    a(f"s_cbranch_scc1 {nofl}")
    a(f"v_mov_b32 v{V_X}, {L_FLAG}")
    a(f"v_mov_b32 v{V_X+1}, 1")
    a(f"ds_write_b32 v{V_X}, v{V_X+1}")
    a.label(nofl)
    a("s_waitcnt lgkmcnt(0)")
    a(f"s_branch {ljoin}")
    a.label(lslow)
    a(f"s_mov_b32 s{S_T+3}, {WS_LOC}")
    for it in range(8):
        a(f"s_mov_b64 exec, s[{S_VAL+2*it}:{S_VAL+2*it+1}]")
        a(f"buffer_load_ubyte v{V_LOC+it}, v{V_ENT+it}, s[{S_WS}:{S_WS+3}], s{S_T+3} offen")
    a("s_mov_b64 exec, -1")
    a("s_waitcnt vmcnt(0)")
    a.label(ljoin)
    a(f"v_mov_b32 v{V_X}, 1")
    for it in range(9):
        a(f"v_lshlrev_b32 v{V_LOC+it}, 2, v{V_LOC+it}")
    for it in range(9):
        a(f"s_mov_b64 exec, s[{S_VAL+2*it}:{S_VAL+2*it+1}]")
        a(f"ds_add_rtn_u32 v{V_RANK+it}, v{V_LOC+it}, v{V_X} offset:{L_CNT}")
    a("s_mov_b64 exec, -1")
    a("s_waitcnt lgkmcnt(0)")
    stamp_at(a, stamps, "ranked")
    a("s_barrier")
    stamp_at(a, stamps, "bar1")
    a("v_and_b32 v1, 63, v0")
    a("v_lshlrev_b32 v2, 2, v1")
    a(f"ds_read_b32 v3, v2 offset:{L_CNT}")
    a(f"v_mov_b32 v4, {L_FLAG}")
    a("ds_read_b32 v4, v4")
    a("s_waitcnt lgkmcnt(0)")
    a("v_mov_b32 v5, v3")
    wave_scan(a, 5)
    a("v_sub_u32 v7, v5, v3")
    a(f"v_readlane_b32 s{S_T+2}, v5, 63")
    a(f"v_readfirstlane_b32 s{S_T+3}, v4")
    a("v_cmp_gt_u32 vcc, 40, v1")
    a(f"v_mov_b32 v{V_END}, 0x7fffffff")
    a("s_nop 0")
    a(f"v_cndmask_b32 v{V_END}, v{V_END}, v5, vcc")
    a(f"s_add_u32 s{S_T+4}, s{S_T+2}, 31")
    a(f"s_lshr_b32 s{S_T+4}, s{S_T+4}, 5")
    a(f"s_max_u32 s{S_T+4}, s{S_T+4}, 1")
    slow = name + "_slow"
    fits = name + "_fits"
    a(f"s_cmp_lg_u32 s{S_MODE}, 0")
    a(f"s_cbranch_scc1 {fits}")
    a(f"s_cmp_gt_u32 s{S_T+4}, {CAP // 32}")
    a(f"s_cbranch_scc1 {slow}")
    a(f"s_cmp_lg_u32 s{S_T+3}, 0")
    a(f"s_cbranch_scc1 {slow}")
    a.label(fits)
    for it in range(9):
        a(f"ds_bpermute_b32 v{V_BP+it}, v{V_LOC+it}, v7")
    a(f"s_mov_b32 s{S_G}, s{S_T+4}")
    for it in range(9):
        a(f"s_waitcnt lgkmcnt({8-it})")
        a(f"v_add_u32 v{V_RANK+it}, v{V_RANK+it}, v{V_BP+it}")
        a(f"v_lshlrev_b32 v{V_RANK+it}, 4, v{V_RANK+it}")
    nowt = name + "_nowt"
    a(f"s_cmp_lg_u32 s{S_MODE}, 0")
    a(f"s_cbranch_scc1 {nowt}")
    weight_transfers(a, name)
    if pfa:
        prefetch_x(a, 0, V_PF, V_PF + 1)
    a.label(nowt)
    nlater = 6 + (2 if pfa else 0)
    for it in range(9):
        a(f"s_waitcnt vmcnt({8-it+nlater})")
        a(f"s_mov_b64 exec, s[{S_VAL+2*it}:{S_VAL+2*it+1}]")
        a(f"ds_write_b128 v{V_RANK+it}, v[{V_REC+4*it}:{V_REC+4*it+3}] offset:{L_RAW}")
    a("s_mov_b64 exec, -1")
    if pf2:
        wl = name + "_pf2"
        a(f"s_cmp_lg_u32 s{S_MODE}, 0")
        a(f"s_cbranch_scc1 {wl}")
        a(f"s_lshr_b32 s{S_T}, s2, 3")
        a(f"s_mul_i32 s{S_T}, s{S_T}, {313*512}")
        a(f"s_mul_i32 s{S_T+1}, s{S_WV}, {39*512}")
        a(f"s_add_u32 s{S_T}, s{S_T}, s{S_T+1}")
        a("v_and_b32 v8, 63, v0")
        a("v_lshrrev_b32 v9, 1, v8")
        a("v_lshlrev_b32 v9, 9, v9")
        a("v_and_b32 v10, 1, v8")
        a("v_lshl_add_u32 v9, v10, 7, v9")
        a(f"v_cmp_gt_u32 vcc, {pf2}, v8")
        a("s_and_b64 exec, exec, vcc")
        a(f"buffer_load_dword v{V_PF}, v9, s[{S_XP}:{S_XP+3}], s{S_T} offen")
        a("s_mov_b64 exec, -1")
        a.label(wl)
    stamp_at(a, stamps, 'records')
    a(f"s_sub_u32 s{S_RHOB}, 7, s{S_WV}")
    a(f"s_cmp_ge_u32 s{S_G}, 8")
    a(f"s_cselect_b32 s{S_RHOB}, s{S_RHOB}, s{S_WV}")
    for rho, lo, hi, ng in ((S_WV, S_LO, S_HI, S_NG), (S_RHOB, S_LOB, S_HIB, S_NGB)):
        a(f"s_mul_i32 s{lo}, s{rho}, s{S_G}")
        a(f"s_add_u32 s{hi}, s{lo}, s{S_G}")
        a(f"s_lshr_b32 s{lo}, s{lo}, 3")
        a(f"s_lshr_b32 s{hi}, s{hi}, 3")
        a(f"s_sub_u32 s{ng}, s{hi}, s{lo}")
        a(f"s_lshl_b32 s{lo}, s{lo}, 5")
        a(f"s_lshl_b32 s{hi}, s{hi}, 5")
    a(f"s_lshl_b32 s{S_T}, s{S_G}, 5")
    a(f"s_sub_u32 s{S_T}, s{S_T}, s{S_T+2}")
    a(f"v_add_u32 v2, s{S_T+2}, v1")
    a("v_lshlrev_b32 v2, 4, v2")
    a(f"v_mov_b32 v{V_X}, 0")
    a(f"v_mov_b32 v{V_X+1}, 0")
    a(f"v_mov_b32 v{V_X+2}, 0")
    a(f"v_mov_b32 v{V_X+3}, 0xffff0000")
    a(f"v_cmp_gt_u32 vcc, s{S_T}, v1")
    a("s_and_b64 exec, exec, vcc")
    a(f"ds_write_b128 v2, v[{V_X}:{V_X+3}] offset:{L_RAW}")
    a("s_mov_b64 exec, -1")
    a("v_bfe_u32 v8, v0, 4, 2")
    a(f"v_lshlrev_b32 v9, 6, v8")
    a(f"s_lshl_b32 s{S_T}, s{S_LO}, 4")
    a(f"s_add_u32 s{S_T}, s{S_T}, {L_RAW}")
    a(f"v_add_u32 v9, s{S_T}, v9")
    a(f"v_add_u32 v{V_SADDR}, 14, v9")
    if ATR:
        a("v_bfe_u32 v10, v0, 2, 2")
        a(f"v_lshl_add_u32 v{V_AADDR}, v10, 4, v9")
    else:
        a("v_and_b32 v10, 3, v0")
        a(f"v_lshl_add_u32 v{V_AADDR}, v10, 1, v9")
    a("v_bfe_u32 v10, v0, 2, 2")
    a("v_lshl_add_u32 v11, v10, 1, v9")
    a(f"v_add_u32 v11, 6, v11")
    a("v_cmp_eq_u32 vcc, 0, v10")
    a(f"v_mov_b32 v12, {L_ONES}")
    a(f"v_mov_b32 v13, -1")
    a(f"v_mov_b32 v14, 0")
    a(f"v_cndmask_b32 v{V_YADDR}, v11, v12, vcc")
    a(f"v_cndmask_b32 v{V_YMASK}, v13, v14, vcc")
    a(f"v_lshlrev_b32 v{V_MBASE}, 4, v8")
    a(f"v_add_u32 v{V_MBASE}, {L_MASK}, v{V_MBASE}")
    a("v_and_b32 v10, 15, v0")
    a("v_lshlrev_b32 v11, 7, v8")
    a("v_lshrrev_b32 v12, 3, v10")
    a("v_lshl_add_u32 v11, v12, 9, v11")
    a("v_and_b32 v12, 7, v10")
    a("v_lshl_add_u32 v11, v12, 4, v11")
    a(f"v_add_u32 v{V_PL}, {L_P}, v11")
    a("v_lshlrev_b32 v10, 4, v10")
    for j in range(8):
        a(f"v_mov_b32 v{V_IDX+2*j+1}, v10")
    a(f"s_mov_b32 s{S_PART}, 0")
    a(f"s_mov_b32 s{S_PARTB}, 0")
    weight_frag_addr(a)
    a(f"s_waitcnt vmcnt({2 if pfa else 1 if pf2 else 0}) lgkmcnt(0)")
    a("s_barrier")
    stamp_at(a, stamps, 'sorted')
    endmain = name + "_endmain"
    hasg = name + "_hasg"
    a(f"s_cmp_lg_u32 s{S_NG}, 0")
    a(f"s_cbranch_scc1 {hasg}")
    weight_frags(a, name + "_e")
    range_nodes(a)
    a(f"s_branch {endmain}")
    a.label(hasg)
    main_loop(a, name, xflag, endmain, prio, stamps)
    a.label(endmain)
    if prio:
        a("s_setprio 0")
    stamp_at(a, stamps, 'mainend')
    a("s_waitcnt lgkmcnt(0)")
    a(f"v_add_u32 v14, s{S_PNODE}, v{V_PL}")
    a(f"v_add_u32 v15, s{S_PNODEB}, v{V_PL}")
    a("v_bfe_u32 v1, v0, 4, 2")
    a("v_and_b32 v2, 15, v0")
    a(f"s_lshr_b32 s{S_OG}, s{S_WV}, 1")
    a(f"s_and_b32 s{S_TP}, s{S_WV}, 1")
    a(f"s_movk_i32 s{S_T}, {P_PITCH}")
    a(f"v_mul_u32_u24 v12, s{S_T}, v2")
    a("v_lshl_add_u32 v12, v1, 4, v12")
    a(f"v_add_u32 v12, {L_P}, v12")
    allsl = 0
    for og in range(4):
        for si in range(4):
            allsl |= OG_SLICES[og][si] << (16 * og + 4 * si)
    a(f"s_mov_b32 s88, {allsl & 0xffffffff}")
    a(f"s_mov_b32 s89, {allsl >> 32}")
    a(f"s_lshl_b32 s90, s{S_OG}, 4")
    a(f"s_lshr_b64 s[88:89], s[88:89], s90")
    for si in range(4):
        a(f"s_bfe_u32 s90, s88, {(4*si) | (4 << 16)}")
        a(f"s_lshl_b32 s90, s90, 7")
        a(f"v_add_u32 v{8+si}, s90, v12")
        a(f"v_add_u32 v{16+si}, {2*16*P_PITCH}, v{8+si}")
    a(f"s_mul_i32 s{S_SCR}, s{S_BK}, {K2_THREADS*96}")
    a(f"s_add_u32 s{S_SCR}, s{S_SCR}, {WS_SCR}")
    a("v_mul_u32_u24 v13, 96, v0")
    a(f"s_movk_i32 s{S_T}, {G_PITCH}")
    a(f"v_mul_u32_u24 v20, s{S_T}, v2")
    a("v_lshl_add_u32 v20, v1, 5, v20")
    a(f"s_lshl_b32 s{S_T}, s{S_TP}, 7")
    a(f"s_add_u32 s{S_T}, s{S_T}, {L_GATE}")
    a(f"v_add_u32 v20, s{S_T}, v20")
    a(f"s_mul_i32 s88, s{S_BK}, 625")
    a("s_add_u32 s89, s88, 15")
    a("s_lshr_b32 s89, s89, 4")
    a("s_add_u32 s88, s88, 640")
    a("s_lshr_b32 s88, s88, 4")
    a("s_sub_u32 s88, s88, s89")
    a(f"s_sub_u32 s{S_NV}, s88, 32")
    a("s_lshl_b32 s89, s89, 9")
    a(f"s_lshl_b32 s90, s{S_OG}, 7")
    a("s_add_u32 s89, s89, s90")
    a(f"s_lshl_b32 s90, s{S_TP}, 6")
    a(f"s_add_u32 s{S_OUTB}, s89, s90")
    a("v_lshlrev_b32 v21, 9, v2")
    a("v_lshl_add_u32 v21, v1, 4, v21")
    a(f"v_add_u32 v22, {16*512}, v21")
    a(f"v_add_u32 v23, {32*512}, v21")
    a(f"s_mov_b32 s{S_NL2E}, 0xbfb8aa3b")
    OA = V_ACC
    oz, oj = a.uid(name + "_oz"), a.uid(name + "_oj")
    a("s_nop 7")
    a(f"s_cmp_eq_u32 s{S_MODE}, 0")
    a(f"s_cbranch_scc1 {oz}")
    a(f"s_cmp_eq_u32 s{S_RND}, 0")
    a(f"s_cbranch_scc1 {oz}")
    for i in range(6):
        a(f"buffer_load_dwordx4 v[{OA+4*i}:{OA+4*i+3}], v13, s[{S_WS}:{S_WS+3}], s{S_SCR} offen offset:{16*i} sc1")
    a("s_waitcnt vmcnt(0)")
    a(f"s_branch {oj}")
    a.label(oz)
    for i in range(24):
        a(f"v_mov_b32 v{OA+i}, 0")
    a.label(oj)
    a("s_mov_b32 s90, 0")
    a("s_waitcnt vmcnt(0) lgkmcnt(0)")
    a("s_barrier")
    stamp_at(a, stamps, "barA")
    rl, rd_ = a.uid(name + "_rl"), a.uid(name + "_rd")
    a.label(rl)
    parts = ((0, S_PART, S_RA, 14, 88), (1, S_PARTB, S_RB, 15, 89))
    for ph, part, rr, va, flag in parts:
        sk = a.uid(name + "_rs")
        a(f"s_cmp_eq_u32 s{rr}, s90")
        a(f"s_cselect_b32 s{flag}, s{part}, 0")
        a(f"s_cmp_eq_u32 s{flag}, 0")
        a(f"s_cbranch_scc1 {sk}")
        b = V_RAW + 4 * ph
        a(f"ds_read_b128 v[{b}:{b+3}], v{va} offset:{ph*1024}")
        a.label(sk)
    a("s_waitcnt lgkmcnt(0)")
    for ph, part, rr, va, flag in parts:
        sk = a.uid(name + "_rs")
        a(f"s_cmp_eq_u32 s{flag}, 0")
        a(f"s_cbranch_scc1 {sk}")
        b = V_RAW + 4 * ph
        for i in range(4):
            a(f"v_lshlrev_b32 v{V_T+2*i}, 16, v{b+i}")
            a(f"v_and_b32 v{V_T+2*i+1}, 0xffff0000, v{b+i}")
        for i in range(8):
            a(f"v_add_f32 v{V_T+i}, v{V_T+i}, v{V_PT+8*ph+i}")
        for i in range(4):
            a(f"v_cvt_pk_bf16_f32 v{b+i}, v{V_T+2*i}, v{V_T+2*i+1}")
        a(f"ds_write_b128 v{va}, v[{b}:{b+3}] offset:{ph*1024}")
        a.label(sk)
    a(f"s_cmp_eq_u32 s{S_RUN}, 0")
    a(f"s_cbranch_scc1 {rd_}")
    a(f"s_lshl_b32 s91, s{S_RUN}, 1")
    a(f"s_and_b32 s{S_RUN}, s{S_RUN}, s91")
    a("s_add_u32 s90, s90, 1")
    a("s_waitcnt lgkmcnt(0)")
    a("s_barrier")
    a(f"s_branch {rl}")
    a.label(rd_)
    a("s_waitcnt lgkmcnt(0)")
    a("s_barrier")
    stamp_at(a, stamps, 'pdone')

    def breads(mt, b):
        for si in range(4):
            for ks in range(2):
                va, off = (8 + si, mt * 16 * P_PITCH) if mt < 2 else (16 + si, 0)
                a(f"ds_read_b128 v[{b+8*si+4*ks}:{b+8*si+4*ks+3}], v{va} offset:{off + ks*64}")

    def sigmoid_ops(mt):
        g, o = V_W + 8 * mt, OA + 8 * mt
        ops = [f"v_mul_f32 v{g+r}, s{S_NL2E}, v{o+r}" for r in range(8)]
        ops += [f"v_exp_f32 v{g+r}, v{g+r}" for r in range(8)]
        ops += [f"v_add_f32 v{g+r}, 1.0, v{g+r}" for r in range(8)]
        ops += [f"v_rcp_f32 v{g+r}, v{g+r}" for r in range(8)]
        return ops

    def gate_write(mt):
        g = V_W + 8 * mt
        a("s_nop 0")
        for hf in range(2):
            a(f"ds_write_b128 v20, v[{g+4*hf}:{g+4*hf+3}] offset:{mt*16*G_PITCH + hf*16}")

    def mfmas(mt, b, fill=(), newer=None):
        fill = list(fill)
        k = 0
        for si in range(4):
            for ks in range(2):
                if newer is not None:
                    a(f"s_waitcnt lgkmcnt({newer + 7 - (2 * si + ks)})")
                wf = V_WF + 16 * SI_BLOCK[si] + 8 * ks
                for hf in range(2):
                    o = OA + 8 * mt + 4 * hf
                    a(f"v_mfma_f32_16x16x32_bf16 v[{o}:{o+3}], v[{wf+4*hf}:{wf+4*hf+3}], v[{b+8*si+4*ks}:{b+8*si+4*ks+3}], v[{o}:{o+3}]")
                    if fill and k == 0:
                        a("s_nop 6")
                    for _ in range(2):
                        if fill:
                            a(fill.pop(0))
                    k += 1
        assert not fill

    def gemm(gate):
        breads(0, V_RAW)
        breads(1, V_FRAG)
        mfmas(0, V_RAW, newer=8)
        breads(2, V_RAW)
        a("s_waitcnt lgkmcnt(8)")
        mfmas(1, V_FRAG, sigmoid_ops(0) if gate else ())
        if gate:
            gate_write(0)
        a(f"s_waitcnt lgkmcnt({2 if gate else 0})")
        mfmas(2, V_RAW, sigmoid_ops(1) if gate else ())
        if gate:
            gate_write(1)
            a("s_nop 7")
            for op in sigmoid_ops(2):
                a(op)
            gate_write(2)

    fin = name + "_fin"
    nextround = name + "_nextround"
    plain, og0done = a.uid(name + "_plain"), a.uid(name + "_og0done")
    a(f"s_cmp_lg_u32 s{S_OG}, 0")
    a(f"s_cbranch_scc1 {plain}")
    a(f"s_cmp_eq_u32 s{S_MODE}, 0")
    a(f"s_cbranch_scc1 {plain}_g")
    a(f"s_cmp_lt_u32 s{S_RND}, {G1-1}")
    a(f"s_cbranch_scc1 {plain}")
    a.label(plain + "_g")
    gemm(True)
    stamp_at(a, stamps, "gemm")
    a("s_waitcnt lgkmcnt(0)")
    a("s_barrier")
    a(f"s_branch {og0done}")
    a.label(plain)
    gemm(False)
    stamp_at(a, stamps, "gemm")
    a(f"s_cmp_eq_u32 s{S_MODE}, 0")
    a(f"s_cbranch_scc1 {fin}")
    a(f"s_add_u32 s{S_RND}, s{S_RND}, 1")
    a(f"s_cmp_ge_u32 s{S_RND}, {G1}")
    a(f"s_cbranch_scc1 {fin}")
    a("s_nop 7")
    for i in range(6):
        a(f"buffer_store_dwordx4 v[{OA+4*i}:{OA+4*i+3}], v13, s[{S_WS}:{S_WS+3}], s{S_SCR} offen offset:{16*i} sc1")
    a(f"s_branch {nextround}")
    a.label(slow)
    weight_transfers(a, name)
    a("s_waitcnt vmcnt(0) lgkmcnt(0)")
    a("s_barrier")
    weight_frag_addr(a)
    weight_frags(a, name + "_s")
    a("s_waitcnt lgkmcnt(0)")
    a("s_barrier")
    a(f"s_mov_b32 s{S_MODE}, 1")
    a(f"s_mov_b32 s{S_RND}, 0")
    a.label(nextround)
    a("s_waitcnt vmcnt(0) lgkmcnt(0)")
    a("s_barrier")
    a("v_lshlrev_b32 v1, 2, v0")
    a("v_mov_b32 v2, 0")
    a("v_cmp_gt_u32 vcc, 80, v0")
    a("s_and_b64 exec, exec, vcc")
    a(f"ds_write_b32 v1, v2 offset:{L_CNT}")
    a("s_mov_b64 exec, -1")
    a(f"s_lshl_b32 s{S_T}, s{S_RND}, 10")
    a(f"s_lshl_b32 s{S_T+1}, s{S_BK}, 2")
    a(f"s_add_u32 s{S_T}, s{S_T}, s{S_T+1}")
    a(f"s_add_u32 s{S_T}, s{S_T}, {WS_TAB}")
    a("v_mov_b32 v1, 0")
    a(f"buffer_load_dword v1, v1, s[{S_WS}:{S_WS+3}], s{S_T} offen")
    a("s_waitcnt vmcnt(0) lgkmcnt(0)")
    a("v_lshrrev_b32 v2, 20, v1")
    a("v_and_b32 v1, 0xfffff, v1")
    for it in range(8):
        a(f"v_subrev_u32 v3, {it*K2_THREADS}, v2")
        a(f"v_max_i32 v3, 0, v3")
        a(f"v_min_u32 v3, {K2_THREADS}, v3")
        a(f"v_add_u32 v4, {it*K2_THREADS}, v1")
        a(f"v_lshl_or_b32 v{V_ENT+it}, v3, 20, v4")
    a(f"v_mov_b32 v{V_I}, v0")
    a("s_barrier")
    a(f"s_branch {rnd}")
    a.label(fin)
    a("s_barrier")
    for mt in range(3):
        for hf in range(2):
            g = V_RAW + 4 * (2 * mt + hf)
            a(f"ds_read_b128 v[{g}:{g+3}], v20 offset:{mt*16*G_PITCH + hf*16}")
    for mt in range(3):
        for hf in range(2):
            o = OA + 8 * mt + 4 * hf
            g = V_RAW + 4 * (2 * mt + hf)
            a(f"s_waitcnt lgkmcnt({5 - (2*mt+hf)})")
            for r in range(4):
                a(f"v_mul_f32 v{o+r}, v{o+r}, v{g+r}")
    a.label(og0done)
    stamp_at(a, stamps, "gate")
    a(f"v_cmp_gt_u32 vcc, s{S_NV}, v2")
    for mt in range(3):
        t = V_FRAG + 4 * mt
        for hf in range(2):
            o = OA + 8 * mt + 4 * hf
            a(f"v_cvt_pk_bf16_f32 v{t+2*hf}, v{o}, v{o+1}")
            a(f"v_cvt_pk_bf16_f32 v{t+2*hf+1}, v{o+2}, v{o+3}")
        if mt == 2:
            a("s_and_b64 exec, exec, vcc")
        a(f"buffer_store_dwordx4 v[{t}:{t+3}], v{21+mt}, s[{S_OUT}:{S_OUT+3}], s{S_OUTB} offen {stflag}")
    if stamps:
        a("s_mov_b64 exec, -1")
        stamp_at(a, stamps, "issued")
        a("s_waitcnt vmcnt(0)")
        stamp_at(a, stamps, "done")
        a("s_waitcnt lgkmcnt(0)")
        a("s_mov_b64 exec, 1")
        a("v_mov_b32 v1, 0")
        a("s_mov_b32 s4, s98")
        for k in range(8):
            a(f"v_mov_b32 v{8+k}, s{4+k}")
        a(f"v_mov_b32 v16, s{S_NG}")
        a(f"buffer_store_dword v16, v1, s[{S_WS}:{S_WS+3}], s{S_ST+4} offen offset:32")
        a(f"buffer_store_dwordx4 v[8:11], v1, s[{S_WS}:{S_WS+3}], s{S_ST+4} offen")
        a(f"buffer_store_dwordx4 v[12:15], v1, s[{S_WS}:{S_WS+3}], s{S_ST+4} offen offset:16")
    a.label(done)
    a("s_endpgm")
    kernel_desc(a, name, 256, sgpr=102)
    return (name, 256, 102, K2_THREADS)


if __name__ == "__main__":
    from gen_k1 import gen_k1
    a = Asm()
    a('.amdgcn_target "amdgcn-amd-amdhsa--gfx950"')
    ks = [gen_k1(a, "part_kernel", stflag="sc1", ldflag="nt"),
          gen_k2(a, "main_kernel", prio=(4,), stflag="sc1", pf2=32, adot=True), gen_k2(a, "mains_kernel", stamps=True, prio="swap", stflag="nt", pf2=32),
          gen_k2(a, "mainq_kernel", stamps=True, prio=(4,), stflag="sc1", pf2=32),
          gen_k2(a, "maind_kernel", stamps=True, prio=(4,), stflag="sc1", pf2=32, adot=True),
          gen_k2(a, "mainclk_kernel", stamps="clk", prio=(4,), stflag="sc1", pf2=32),
          gen_k2(a, "mainclkt_kernel", stamps="clk", prio=(4,), stflag="sc1", pf2=32, adot=True),
          ]
    metadata(a, ks, 96)
    open("k12.s", "w").write(a.text())
```
